```python
import torch

def _softmax(x, axis=-1):
    return torch.softmax(x, dim=axis)

def _gelu(x):
    return torch.nn.functional.gelu(x, approximate='tanh')

def _silu(x):
    return torch.nn.functional.silu(x)

def _sigmoid(x):
    return torch.sigmoid(x)

def _layernorm(x, axis=-1, eps=1e-05):
    m = x.mean(dim=axis, keepdim=True)
    v = x.var(dim=axis, keepdim=True, unbiased=False)
    return (x - m) / torch.sqrt(v + eps)

def _scatter_add(tgt, idx, src, axis=0):
    return tgt.clone().index_add_(axis, idx, src)

def _segment_sum(src, seg, n):
    out = torch.zeros((n,) + src.shape[1:], dtype=src.dtype)
    return out.index_add_(0, seg, src)

def _pad(x, pw):
    flat = tuple((v for pair in reversed(pw) for v in pair))
    return torch.nn.functional.pad(x, flat)
kernel_name = 'standalone__conformer_family_zipformer__speech'

def setup_inputs():

    _w = lambda a: (lambda t: t.to(torch.bfloat16) if t.is_floating_point() else t)(torch.as_tensor(a))
    B, T, D, K, H = (2, 4000, 256, 5, 4)
    sc = 0.1
    return {'x': _w((lambda *s: torch.randn(*s, dtype=torch.bfloat16) * 0.8)(B, T, D)), 'w_ff1a': _w((lambda *s: torch.randn(*s, dtype=torch.bfloat16) * 0.8)(D, 4 * D) * sc), 'w_ff1b': _w((lambda *s: torch.randn(*s, dtype=torch.bfloat16) * 0.8)(4 * D, D) * sc), 'w_qkv': _w((lambda *s: torch.randn(*s, dtype=torch.bfloat16) * 0.8)(D, 3 * D) * sc), 'w_o': _w((lambda *s: torch.randn(*s, dtype=torch.bfloat16) * 1.6)(D, D) * sc), 'w_pw1': _w((lambda *s: torch.randn(*s, dtype=torch.bfloat16) * 1.6)(D, 2 * D) * sc), 'dw': _w((lambda *s: torch.randn(*s, dtype=torch.bfloat16) * 0.4)(K, D)), 'w_pw2': _w((lambda *s: torch.randn(*s, dtype=torch.bfloat16) * 0.4)(D, D) * sc), 'w_ff2a': _w((lambda *s: torch.randn(*s, dtype=torch.bfloat16) * 0.8)(D, 4 * D) * sc), 'w_ff2b': _w((lambda *s: torch.randn(*s, dtype=torch.bfloat16) * 0.8)(4 * D, D) * sc)}

def reference(x, w_ff1a, w_ff1b, w_qkv, w_o, w_pw1, dw, w_pw2, w_ff2a, w_ff2b):
    B, T, D = x.shape
    K = dw.shape[0]
    H = 4
    Dh = D // H
    h = _layernorm(x, axis=-1)
    h = _silu(h @ w_ff1a) @ w_ff1b
    x = x + 0.5 * h
    h = _layernorm(x, axis=-1)
    qkv = h @ w_qkv
    q = (lambda x, *d: x.permute(*d))(qkv[..., :D].reshape(B, T, H, Dh), 0, 2, 1, 3)
    k = (lambda x, *d: x.permute(*d))(qkv[..., D:2 * D].reshape(B, T, H, Dh), 0, 2, 1, 3)
    v = (lambda x, *d: x.permute(*d))(qkv[..., 2 * D:].reshape(B, T, H, Dh), 0, 2, 1, 3)
    scale = Dh ** (-0.5)
    scores = torch.einsum('bhqd,bhkd->bhqk', q, k) * scale
    p = _softmax(scores, axis=-1)
    att = torch.einsum('bhqk,bhkd->bhqd', p, v)
    att = (lambda x, *d: x.permute(*d))(att, 0, 2, 1, 3).reshape(B, T, D)
    x = x + att @ w_o
    h = _layernorm(x, axis=-1)
    h = h @ w_pw1
    a, b = (h[..., :D].clone(), h[..., D:].clone())
    h = a * _sigmoid(b)
    pad = K // 2
    hp = _pad(h, ((0, 0), (pad, pad), (0, 0)))
    c = torch.zeros_like(h)
    for i in range(K):
        c = c + hp[:, i:i + T, :] * dw[i][None, None, :]
    x = x + _silu(c) @ w_pw2
    h = _layernorm(x, axis=-1)
    h = _silu(h @ w_ff2a) @ w_ff2b
    x = x + 0.5 * h
    return _layernorm(x, axis=-1)
```

```python
import re

TRANS = ('v_exp_f32', 'v_log_f32', 'v_rcp_f32', 'v_rsq_f32', 'v_sqrt_f32', 'v_sin_f32', 'v_cos_f32',
         'v_rcp_iflag_f32')

_reg_re = re.compile(r'^(v|s|a)(?:(\d+)|\[(\d+):(\d+)\])$')


def parse_regs(tok):
    tok = tok.strip()
    neg = False
    if tok.startswith('-'):
        tok = tok[1:]
    if tok.startswith('abs(') and tok.endswith(')'):
        tok = tok[4:-1]
    if tok.startswith('|') and tok.endswith('|'):
        tok = tok[1:-1]
    if tok in ('vcc', 'vcc_lo', 'vcc_hi'):
        return ('s', ['vcc'])
    if tok in ('exec', 'exec_lo', 'exec_hi'):
        return ('s', ['exec'])
    if tok == 'm0':
        return ('s', ['m0'])
    m = _reg_re.match(tok)
    if not m:
        return None
    k = m.group(1)
    if m.group(2) is not None:
        return (k, [int(m.group(2))])
    return (k, list(range(int(m.group(3)), int(m.group(4)) + 1)))


def split_operands(s):
    out, depth, cur = [], 0, ''
    for ch in s:
        if ch == '[':
            depth += 1
        elif ch == ']':
            depth -= 1
        if ch == ',' and depth == 0:
            out.append(cur.strip())
            cur = ''
        else:
            cur += ch
    if cur.strip():
        out.append(cur.strip())
    return out


class Inst:
    __slots__ = ('text', 'mn', 'cls', 'vw', 'vr', 'sw', 'sr', 'passes', 'srcc', 'ab', 'is_trans', 'wide_store',
                 'lds_dma', 'permlane', 'dpp', 'readlane')

    def __init__(self, text):
        self.text = text
        body = text.split(';')[0].split('//')[0].strip()
        parts = body.split(None, 1)
        mn = parts[0]
        mn = re.sub(r'_e(32|64)$', '', mn)
        self.mn = mn
        rest = parts[1] if len(parts) > 1 else ''
        ops = split_operands(rest)
        clean = []
        flags = []
        for o in ops:
            ws = o.split()
            clean.append(ws[0])
            flags += ws[1:]
        self.vw, self.vr, self.sw, self.sr = set(), set(), set(), set()
        self.passes = 0
        self.srcc = set()
        self.ab = set()
        self.is_trans = mn in TRANS
        self.wide_store = False
        self.lds_dma = False
        self.permlane = mn.startswith('v_permlane')
        self.dpp = '_dpp' in mn or any(f.startswith('row_') or f.startswith('quad_perm') for f in flags)
        self.readlane = mn in ('v_readlane_b32', 'v_readfirstlane_b32')

        def addr(tok):
            r = parse_regs(tok)
            if r is None:
                return
            (self.vr if r[0] in 'va' else self.sr).update(
                [(r[0], i) for i in r[1]] if r[0] in 'va' else r[1])

        def addw(tok):
            r = parse_regs(tok)
            if r is None:
                return
            (self.vw if r[0] in 'va' else self.sw).update(
                [(r[0], i) for i in r[1]] if r[0] in 'va' else r[1])

        if mn.startswith('v_mfma'):
            self.cls = 'mfma'
            self.passes = 8 if '32x32' in mn else 4
            addw(clean[0])
            for t in clean[1:]:
                addr(t)
            for t in clean[1:3]:
                r = parse_regs(t)
                if r:
                    self.ab.update((r[0], i) for i in r[1])
            r = parse_regs(clean[3])
            if r:
                self.srcc.update((r[0], i) for i in r[1])
        elif mn.startswith('v_'):
            self.cls = 'valu'
            if mn.startswith('v_cmp'):
                addw(clean[0])
                if mn.startswith('v_cmpx'):
                    self.sw.add('exec')
                for t in clean[1:]:
                    addr(t)
            elif mn.startswith('v_permlane'):
                for t in clean[:2]:
                    addw(t)
                    addr(t)
            elif mn in ('v_add_co_u32', 'v_sub_co_u32', 'v_addc_co_u32', 'v_subb_co_u32', 'v_div_scale_f32',
                        'v_mad_u64_u32'):
                addw(clean[0])
                addw(clean[1])
                for t in clean[2:]:
                    addr(t)
            else:
                addw(clean[0])
                for t in clean[1:]:
                    addr(t)
                if mn.startswith('v_fmac') or mn.startswith('v_pk_fmac') or mn.startswith('v_dot2c') \
                        or mn == 'v_writelane_b32' or self.dpp:
                    addr(clean[0])
                if mn == 'v_cndmask_b32' and len(clean) == 3:
                    self.sr.add('vcc')
        elif mn.startswith('buffer_') or mn.startswith('global_'):
            self.cls = 'vmem'
            lds = 'lds' in flags or 'lds' in mn
            self.lds_dma = lds
            if 'store' in mn or 'atomic' in mn:
                if mn.startswith('buffer_'):
                    for t in clean:
                        addr(t)
                    if mn.endswith('x4') or mn.endswith('x3'):
                        self.wide_store = True
                else:
                    for t in clean:
                        addr(t)
                    if mn.endswith('x4') or mn.endswith('x3'):
                        self.wide_store = True
            else:
                if lds:
                    for t in clean:
                        addr(t)
                    self.sr.add('m0')
                else:
                    addw(clean[0])
                    if 'd16' in mn:
                        addr(clean[0])
                    for t in clean[1:]:
                        addr(t)
        elif mn.startswith('ds_'):
            self.cls = 'ds'
            if 'read' in mn or 'permute' in mn or 'swizzle' in mn:
                addw(clean[0])
                for t in clean[1:]:
                    addr(t)
            else:
                for t in clean:
                    addr(t)
        elif mn.startswith('s_load') or mn.startswith('s_buffer_load') or mn.startswith('s_memtime') \
                or mn.startswith('s_memrealtime'):
            self.cls = 'smem'
            addw(clean[0])
            for t in clean[1:]:
                addr(t)
        elif mn.startswith('s_'):
            self.cls = 'salu'
            if mn in ('s_nop', 's_waitcnt', 's_barrier', 's_endpgm', 's_setprio', 's_sleep') or \
                    mn.startswith('s_cbranch') or mn == 's_branch' or mn.startswith('s_cmp'):
                for t in clean:
                    addr(t)
            else:
                if clean:
                    addw(clean[0])
                for t in clean[1:]:
                    addr(t)
                if 'saveexec' in mn:
                    self.sw.add('exec')
        else:
            self.cls = 'other'


def nstates(inst):
    if inst.mn == 's_nop':
        return int(inst.text.split()[1], 0) + 1
    return 1


def fix_hazards(lines, verbose=False):
    out = []
    pos = 0
    valu_vw = {}
    trans_vw = {}
    mfma_vw = {}
    mfma_cr = {}
    valu_sw = {}
    salu_m0 = None
    wstore = {}
    nins = 0

    def drain():
        nonlocal pos
        need = pos
        for (p, passes, _) in mfma_vw.values():
            need = max(need, p + (12 if passes == 8 else 8))
        for (p, passes) in mfma_cr.values():
            need = max(need, p + (7 if passes == 8 else 3))
        for p in valu_vw.values():
            need = max(need, p + 2)
        for p in valu_sw.values():
            need = max(need, p + 5)
        for p in wstore.values():
            need = max(need, p + 2)
        if salu_m0 is not None:
            need = max(need, salu_m0 + 1)
        emit_nops(need - pos)

    def emit_nops(n):
        nonlocal pos, nins
        while n > 0:
            k = min(n, 16)
            out.append(f'    s_nop {k - 1}')
            pos += k
            n -= k
            nins += 1

    for ln in lines:
        s = ln.strip()
        if not s or s.startswith(';') or s.startswith('.') or s.startswith('//'):
            out.append(ln)
            continue
        if s.endswith(':') or re.match(r'^[\w.$]+:', s):
            if not s.rstrip(':').endswith('_ret'):
                drain()
            out.append(ln)
            continue
        ins = Inst(s)
        need = pos
        def req(p, ws):
            nonlocal need
            need = max(need, p + 1 + ws)
        reads = ins.vr
        writes = ins.vw
        if ins.cls == 'mfma':
            for r in reads:
                if r in valu_vw:
                    req(valu_vw[r], 2)
            for r in ins.ab:
                if r in mfma_vw:
                    p, ps, D = mfma_vw[r]
                    req(p, 12 if ps == 8 else 8)
            for r in ins.srcc:
                if r in mfma_vw:
                    p, ps, D = mfma_vw[r]
                    if D == frozenset(ins.srcc) and ps == ins.passes:
                        pass
                    else:
                        req(p, 10 if ps == 8 else 6)
            for r in writes:
                if r in mfma_vw and r not in ins.srcc:
                    p, ps, D = mfma_vw[r]
                    req(p, 10 if ps == 8 else 6)
            if 'exec' in valu_sw:
                req(valu_sw['exec'], 4)
        else:
            if ins.cls in ('valu', 'vmem', 'ds'):
                for r in (reads | writes):
                    if r in mfma_vw:
                        p, ps, D = mfma_vw[r]
                        req(p, 12 if ps == 8 else 8)
            if ins.cls == 'valu':
                for r in writes:
                    if r in mfma_cr:
                        p, ps = mfma_cr[r]
                        req(p, 7 if ps == 8 else 3)
                    if r in wstore:
                        req(wstore[r], 2)
                if not ins.is_trans:
                    for r in reads:
                        if r in trans_vw:
                            req(trans_vw[r], 1)
                if ins.permlane or ins.dpp:
                    for r in reads:
                        if r in valu_vw:
                            req(valu_vw[r], 2)
                if ins.readlane:
                    for r in reads:
                        if r in valu_vw:
                            req(valu_vw[r], 1)
                    if 'exec' in valu_sw:
                        req(valu_sw['exec'], 4)
                for r in ins.sr:
                    if r in valu_sw:
                        req(valu_sw[r], 4 if ins.mn in ('v_readlane_b32', 'v_writelane_b32') else 2)
            if ins.cls in ('vmem', 'ds'):
                for r in writes:
                    if r in wstore:
                        req(wstore[r], 1)
            if ins.cls == 'vmem':
                for r in ins.sr:
                    if r in valu_sw:
                        req(valu_sw[r], 5)
                if ins.lds_dma and salu_m0 is not None:
                    req(salu_m0, 1)
            if ins.cls == 'salu':
                for r in ins.sr:
                    if r in valu_sw:
                        req(valu_sw[r], 1)
                if ins.mn.startswith('s_cbranch_vcc') and 'vcc' in valu_sw:
                    req(valu_sw['vcc'], 1)
        if (ins.mn.startswith('s_cbranch') or ins.mn == 's_branch') and ' Lrs' not in s:
            drain()
            need = max(need, pos)
        emit_nops(need - pos)
        out.append(ln)
        mypos = pos
        pos += nstates(ins)
        if ins.cls == 'valu':
            for r in writes:
                valu_vw[r] = mypos
                if ins.is_trans:
                    trans_vw[r] = mypos
                else:
                    trans_vw.pop(r, None)
                mfma_vw.pop(r, None)
            for r in ins.sw:
                valu_sw[r] = mypos
        elif ins.cls == 'mfma':
            D = frozenset(writes)
            for r in writes:
                mfma_vw[r] = (mypos, ins.passes, D)
                valu_vw.pop(r, None)
                trans_vw.pop(r, None)
            for r in ins.srcc:
                mfma_cr[r] = (mypos, ins.passes)
        elif ins.cls in ('vmem', 'ds'):
            for r in writes:
                mfma_vw.pop(r, None)
                valu_vw.pop(r, None)
                trans_vw.pop(r, None)
            if ins.wide_store:
                for r in ins.vr:
                    wstore[r] = mypos
        elif ins.cls in ('salu', 'smem'):
            for r in ins.sw:
                valu_sw.pop(r, None)
                if r == 'm0':
                    salu_m0 = mypos
    if verbose:
        print('hazard nops inserted:', nins)
    return out


class K:
    def __init__(self, name):
        self.name = name
        self.lines = []
        self.lab = 0

    def __call__(self, s):
        for l in s.strip('\n').split('\n'):
            l = l.strip()
            if l:
                self.lines.append('    ' + l)

    def label(self, n):
        self.lines.append(f'{n}:')

    def newlabel(self, p='L'):
        self.lab += 1
        return f'{p}_{self.name}_{self.lab}'

    def comment(self, s):
        self.lines.append(f'    ; {s}')


def vr(a, n=1):
    return f'v{a}' if n == 1 else f'v[{a}:{a + n - 1}]'


def sr(a, n=1):
    return f's{a}' if n == 1 else f's[{a}:{a + n - 1}]'


def kernel_text(k, vgpr, sgpr=102, accum=None):
    body = fix_hazards(k.lines)
    acc = accum if accum is not None else min(256, (vgpr + 3) // 4 * 4)
    t = []
    t.append(f'.globl {k.name}')
    t.append('.p2align 8')
    t.append(f'.type {k.name},@function')
    t.append(f'{k.name}:')
    t += body
    t.append('    s_endpgm')
    desc = f'''.amdhsa_kernel {k.name}
  .amdhsa_next_free_vgpr {vgpr}
  .amdhsa_next_free_sgpr {sgpr}
  .amdhsa_accum_offset {acc}
  .amdhsa_group_segment_fixed_size 0
  .amdhsa_kernarg_size 104
  .amdhsa_user_sgpr_count 2
  .amdhsa_user_sgpr_kernarg_segment_ptr 1
  .amdhsa_system_sgpr_workgroup_id_x 1
.end_amdhsa_kernel'''
    return '\n'.join(t), desc


def module_text(header, kernels):
    out = [header.rstrip('\n')]
    for (k, vg, grid, block, lds) in kernels:
        out.append(f'; @launch kernel={k.name} grid=({grid},1,1) block=({block},1,1) lds={lds}')
    out.append('.amdgcn_target "amdgcn-amd-amdhsa--gfx950"')
    out.append('.text')
    descs = []
    seen = set()
    for (k, vg, grid, block, lds) in kernels:
        if k.name in seen:
            continue
        seen.add(k.name)
        t, d = kernel_text(k, vg)
        out.append(t)
        descs.append(d)
    out.append('.section .rodata,"a"')
    for d in descs:
        out.append('.p2align 6')
        out.append(d)
    return '\n'.join(out) + '\n'
```

```python
from asmgen import *
from gen import *

def gen_k2():
    k = K('attn_kernel')
    end = 'L_k2_end'
    vL16, vA0, vA1 = 1, 2, 3
    vL = {'a': 4, 'b': 5}
    vL2 = {'a': 6, 'b': 7}
    vM = {'a': 8, 'b': 9}
    vT = 10
    vQ = {'a': 16, 'b': 32}
    vS = {'a': 48, 'b': 64}
    vN = {'a': 80, 'b': 96}
    vO = {'a': 112, 'b': 144}
    vP = {'a': 176, 'b': 184}
    vK = 192
    vV = 224
    NST = 4
    rare = []
    k(f'''
    s_cmp_ge_u32 s2, 256
    s_cbranch_scc1 {end}
    s_load_dwordx2 s[6:7], s[0:1], 96
    v_lshrrev_b32 v10, 6, v0
    v_and_b32 v11, 63, v0
    v_readfirstlane_b32 s16, v10
    v_lshlrev_b32 v{vL16}, 4, v11
    s_and_b32 s17, s16, 1            ; qg
    s_lshr_b32 s18, s16, 1           ; kq
    s_and_b32 s19, s2, 7             ; bh
    s_lshr_b32 s20, s2, 3            ; qb
    s_lshl_b32 s21, s20, 2
    s_lshl_b32 s22, s17, 1
    s_add_u32 s21, s21, s22
    s_add_u32 s22, s21, 1            ; tile b
    s_min_u32 s23, s21, 124
    s_min_u32 s24, s22, 124
    s_lshl_b32 s25, s19, 19
    s_add_u32 s25, s25, {WS_Q}
    s_lshl_b32 s23, s23, 12
    s_lshl_b32 s24, s24, 12
    s_add_u32 s23, s23, s25          ; Q a offset
    s_add_u32 s24, s24, s25          ; Q b offset
    s_lshl_b32 s26, s19, 20
    s_lshl_b32 s27, s18, 18
    s_add_u32 s26, s26, s27
    s_lshl_b32 s27, s17, 12
    s_add_u32 s26, s26, s27
    s_add_u32 s26, s26, {WS_KV}
    s_xor_b32 s27, s17, 1
    s_lshl_b32 s27, s27, 13
    s_add_u32 s28, s26, s27
    s_lshl_b32 s27, s18, 13
    s_lshl_b32 s29, s17, 12
    s_add_u32 s27, s27, s29
    s_add_u32 s32, s27, 0
    s_add_u32 s33, s27, 32768
    s_add_u32 s34, s27, 65536
    s_add_u32 s35, s27, 98304
    s_lshl_b32 s27, s18, 13
    v_add_u32 v{vA0}, s27, v{vL16}
    v_add_u32 v{vA1}, 0x10000, v{vA0}
    s_waitcnt lgkmcnt(0)
    ''')
    srd(k, 12, 6, WS_SIZE)
    for x in 'ab':
        for kb in range(4):
            k(f'buffer_load_dwordx4 {vr(vQ[x] + 4 * kb, 4)}, v{vL16}, s[12:15], s{23 if x == "a" else 24} offen offset:{1024 * kb}')
    k('s_mov_b32 m0, s35')
    for j in range(4):
        k(f'buffer_load_dwordx4 v{vL16}, s[12:15], s26 offen offset:{1024 * j} lds')

    def dma(stage):
        k(f's_mov_b32 m0, s{32 + stage % NST}')
        for j in range(4):
            k(f'buffer_load_dwordx4 v{vL16}, s[12:15], s28 offen offset:{1024 * j} lds')
        k('s_add_u32 s28, s28, 8192')
    for st in range(3):
        dma(st)
    for x in 'ab':
        k(f'v_mov_b32 v{vL[x]}, 0')
        k(f'v_mov_b32 v{vL2[x]}, 0')
        k(f'v_mov_b32 v{vM[x]}, 0')
        for i in range(16):
            k(f'v_mov_b32 v{vN[x] + i}, 0')
        for i in range(32):
            k(f'v_mov_b32 v{vO[x] + i}, 0')
    k('s_waitcnt vmcnt(12)')
    k('s_barrier')

    def lds_addr(slot, off):
        a = slot * 32768 + off
        return (vA0, a) if a < 65536 else (vA1, a - 65536)

    def rdK(par, slot):
        L = []
        for j in range(4):
            v, o = lds_addr(slot, 1024 * j)
            L.append(f'ds_read_b128 {vr(vK + 16 * par + 4 * j, 4)}, v{v} offset:{o}')
        return L

    def rdV(par, slot):
        L = []
        for j in range(4):
            v, o = lds_addr(slot, 4096 + 1024 * j)
            L.append(f'ds_read_b128 {vr(vV + 16 * par + 4 * j, 4)}, v{v} offset:{o}')
        return L

    def qk(x, par):
        L = []
        for kb in range(4):
            cc = vr(vN[x], 16) if kb == 0 else vr(vS[x], 16)
            L.append(f'v_mfma_f32_32x32x16_bf16 {vr(vS[x], 16)}, {vr(vK + 16 * par + 4 * kb, 4)}, {vr(vQ[x] + 4 * kb, 4)}, {cc}')
        return L

    def pv(x, par):
        L = []
        for s in range(2):
            for dt in range(2):
                o = vr(vO[x] + 16 * dt, 16)
                L.append(f'v_mfma_f32_32x32x16_bf16 {o}, {vr(vV + 16 * par + 8 * dt + 4 * s, 4)}, {vr(vP[x] + 4 * s, 4)}, {o}')
        return L

    def rescale_block(x, init):
        S, N, O = vS[x], vN[x], vO[x]
        L = [f'v_mov_b32 v{vT + 1}, v{vT}',
             f'v_mov_b32 v{vT + 2}, v{vT}',
             f's_nop 1',
             f'v_permlane32_swap_b32 v{vT + 1}, v{vT + 2}',
             f'v_max_f32 v{vT + 1}, v{vT + 1}, v{vT + 2}']
        if not init:
            L.append(f'v_max_f32 v{vT + 1}, 0, v{vT + 1}')
        L.append(f'v_add_f32 v{vM[x]}, v{vM[x]}, v{vT + 1}')
        for i in range(16):
            L.append(f'v_sub_f32 v{S + i}, v{S + i}, v{vT + 1}')
        for i in range(16):
            L.append(f'v_sub_f32 v{N + i}, v{N + i}, v{vT + 1}')
        if not init:
            L.append(f'v_sub_f32 v{vT + 2}, 0, v{vT + 1}')
            L.append(f'v_exp_f32 v{vT + 2}, v{vT + 2}')
            L.append(f's_nop 0')
            L.append(f'v_mul_f32 v{vL[x]}, v{vL[x]}, v{vT + 2}')
            L.append(f'v_mul_f32 v{vL2[x]}, v{vL2[x]}, v{vT + 2}')
            for i in range(32):
                L.append(f'v_mul_f32 v{O + i}, v{O + i}, v{vT + 2}')
        return L

    def softmax(x, init):
        S = vS[x]
        L = [f'v_max3_f32 v{vT}, v{S}, v{S + 1}, v{S + 2}']
        for i in range(3, 15, 2):
            L.append(f'v_max3_f32 v{vT}, v{vT}, v{S + i}, v{S + i + 1}')
        L.append(f'v_max_f32 v{vT}, v{vT}, v{S + 15}')
        if init:
            L.append('\n'.join(rescale_block(x, True)))
        else:
            lab = k.newlabel('Lrs')
            L.append(f'v_cmp_lt_f32 vcc, 0x41000000, v{vT}\ns_cbranch_vccnz {lab}\n{lab}_ret:')
            rare.append((lab, rescale_block(x, False)))
        for i in range(0, 16, 2):
            L.append(f'v_exp_f32 v{S + i}, v{S + i}')
            L.append(f'v_exp_f32 v{S + i + 1}, v{S + i + 1}')
            if i >= 2:
                j = i - 2
                L.append(f'v_add_f32 v{vL[x]}, v{vL[x]}, v{S + j}')
                L.append(f'v_add_f32 v{vL2[x]}, v{vL2[x]}, v{S + j + 1}')
                L.append(f'v_cvt_pk_bf16_f32 v{vP[x] + j // 2}, v{S + j}, v{S + j + 1}')
        j = 14
        L.append(f'v_add_f32 v{vL[x]}, v{vL[x]}, v{S + j}')
        L.append(f'v_add_f32 v{vL2[x]}, v{vL2[x]}, v{S + j + 1}')
        L.append(f'v_cvt_pk_bf16_f32 v{vP[x] + j // 2}, v{S + j}, v{S + j + 1}')
        return L

    def emit_mix(mf, va, pre=()):
        for p in pre:
            k(p)
        n = len(mf)
        per = len(va) / max(n, 1)
        vi = 0
        for m in range(n):
            k(mf[m])
            tgt = int(round(per * (m + 1)))
            while vi < min(tgt, len(va)):
                for l in va[vi].split('\n'):
                    if l.endswith(':'):
                        k.label(l[:-1])
                    else:
                        k(l)
                vi += 1
        while vi < len(va):
            for l in va[vi].split('\n'):
                if l.endswith(':'):
                    k.label(l[:-1])
                else:
                    k(l)
            vi += 1

    def setinf(x):
        lab = k.newlabel('Lni')
        k(f's_cmp_eq_u32 s18, 3')
        k(f's_cbranch_scc0 {lab}')
        for i in range(16):
            k(f'v_mov_b32 v{vN[x] + i}, 0xff800000')
        k.label(lab)

    for l in rdK(0, 3):
        k(l)
    k('s_waitcnt lgkmcnt(0)')
    for l in qk('a', 0):
        k(l)

    def iteration(i, imod, first=False):
        par = imod & 1
        npar = par ^ 1
        last = (i == 31)
        if i is None or i <= 29:
            k('s_waitcnt vmcnt(8)')
        elif i == 30:
            k('s_waitcnt vmcnt(4)')
        else:
            k('s_waitcnt vmcnt(0)')
        k('s_barrier')
        if i is None or i + 3 <= 31:
            dma(imod + 3)
        pre = rdV(par, imod)
        if not last:
            pre = rdK(npar, imod) + pre
        if i == 29:
            setinf('b')
        mf = qk('b', par) + ([] if first else pv('b', npar))
        emit_mix(mf, softmax('a', first), pre)
        if i == 28:
            setinf('a')
        k('s_waitcnt lgkmcnt(0)')
        mf = ([] if last else qk('a', npar)) + pv('a', par)
        emit_mix(mf, softmax('b', first))

    iteration(0, 0, first=True)
    k('s_mov_b32 s30, 6')
    lp = 'L_k2_loop'
    k.label(lp)
    for im in (1, 2, 3, 0):
        iteration(None, im)
    k(f'''
    s_sub_u32 s30, s30, 1
    s_cmp_lg_u32 s30, 0
    s_cbranch_scc1 {lp}
    ''')
    for i in range(25, 32):
        iteration(i, i % 4)
    for l in pv('b', 1):
        k(l)
    for x in 'ab':
        k(f'v_add_f32 v{vL[x]}, v{vL[x]}, v{vL2[x]}')
        k(f'v_mov_b32 v{vT}, v{vL[x]}')
        k(f'v_mov_b32 v{vT + 1}, v{vL[x]}')
        k('s_nop 1')
        k(f'v_permlane32_swap_b32 v{vT}, v{vT + 1}')
        k(f'v_add_f32 v{vL[x]}, v{vT}, v{vT + 1}')
    k('s_barrier')
    k(f'''
    s_lshl_b32 s31, s16, 14
    v_add_u32 v{vA0}, s31, v{vL16}
    s_lshl_b32 s31, s16, 10
    s_add_u32 s31, s31, 0x20000
    v_lshrrev_b32 v{vA1}, 1, v{vL16}
    v_add_u32 v{vA1}, s31, v{vA1}
    ''')
    for q in range(16):
        k(f'ds_write_b128 v{vA0}, {vr(vO["a"] + 4 * q, 4)} offset:{1024 * q}')
    for xi, x in enumerate('ab'):
        k(f'v_mov_b32 v{vT}, v{vM[x]}')
        k(f'v_mov_b32 v{vT + 1}, v{vL[x]}')
        k(f'ds_write_b64 v{vA1}, {vr(vT, 2)} offset:{512 * xi}')
    k('s_waitcnt lgkmcnt(0)')
    k('s_barrier')
    k(f'''
    s_lshl_b32 s31, s17, 14
    s_lshl_b32 s36, s18, 12
    s_add_u32 s31, s31, s36
    v_add_u32 v{vA0}, s31, v{vL16}
    v_add_u32 v{vK}, 0x10000, v{vA0}
    s_lshl_b32 s31, s17, 10
    s_lshr_b32 s36, s18, 1
    s_lshl_b32 s36, s36, 9
    s_add_u32 s31, s31, s36
    s_add_u32 s31, s31, 0x20000
    v_lshrrev_b32 v{vA1}, 1, v{vL16}
    v_add_u32 v{vA1}, s31, v{vA1}
    ''')
    R0 = 48
    for kp in range(4):
        k(f'ds_read_b64 {vr(16 + 2 * kp, 2)}, v{vA1} offset:{2048 * kp}')
    for kp in range(4):
        for q in range(4):
            a = kp * 32768 + q * 1024
            v, o = (vA0, a) if a < 65536 else (vK, a - 65536)
            k(f'ds_read_b128 {vr(R0 + 16 * kp + 4 * q, 4)}, v{v} offset:{o}')
    k('s_waitcnt lgkmcnt(0)')
    k(f'''
    v_max_f32 v24, v16, v18
    v_max3_f32 v24, v24, v20, v22
    v_sub_f32 v25, v16, v24
    v_sub_f32 v26, v18, v24
    v_sub_f32 v27, v20, v24
    v_sub_f32 v28, v22, v24
    v_exp_f32 v25, v25
    v_exp_f32 v26, v26
    v_exp_f32 v27, v27
    v_exp_f32 v28, v28
    s_nop 0
    v_mul_f32 v29, v25, v17
    v_fmac_f32 v29, v26, v19
    v_fmac_f32 v29, v27, v21
    v_fmac_f32 v29, v28, v23
    v_rcp_f32 v29, v29
    s_nop 0
    v_mul_f32 v25, v25, v29
    v_mul_f32 v26, v26, v29
    v_mul_f32 v27, v27, v29
    v_mul_f32 v28, v28, v29
    ''')
    for i in range(16):
        k(f'v_mul_f32 v{R0 + i}, v{R0 + i}, v25')
    for kp in range(1, 4):
        for i in range(16):
            k(f'v_fmac_f32 v{R0 + i}, v{R0 + 16 * kp + i}, v{25 + kp}')
    for i in range(8):
        k(f'v_cvt_pk_bf16_f32 v{32 + i}, v{R0 + 2 * i}, v{R0 + 2 * i + 1}')
    k(f'''
    s_lshr_b32 s36, s18, 1
    s_add_u32 s36, s36, s21           ; tile
    s_cmp_gt_u32 s36, 124
    s_cbranch_scc1 {end}
    s_lshr_b32 s37, s19, 2            ; b
    s_mul_i32 s37, s37, 125
    s_add_u32 s36, s36, s37
    s_lshl_b32 s36, s36, 14
    s_and_b32 s37, s19, 3             ; head
    s_lshl_b32 s37, s37, 12
    s_add_u32 s36, s36, s37
    s_and_b32 s37, s18, 1
    s_lshl_b32 s37, s37, 11
    s_add_u32 s36, s36, s37
    s_add_u32 s36, s36, {WS_ATT}
    buffer_store_dwordx4 v[32:35], v{vL16}, s[12:15], s36 offen
    buffer_store_dwordx4 v[36:39], v{vL16}, s[12:15], s36 offen offset:1024
    s_branch {end}
    ''')
    for lab, L in rare:
        k.label(lab)
        k('s_nop 12')
        for l in L:
            k(l)
        k('s_nop 4')
        k(f's_branch {lab}_ret')
    k.label(end)
    return k, 256, 256, 128 * 1024 + 8192
```

```python
from asmgen import *
from gen import *


def gemm_tile(c, st, idx, acc, swap=False, filler=()):
    k = c.k
    main = []
    for kb in range(16):
        sub = K('tmp')
        st.k = sub
        st.vm.k = sub
        a = st.get(idx)
        cc = '0' if kb == 0 else vr(acc, 16)
        xb = vr(c.vXN + 4 * kb, 4)
        if not swap:
            sub(f'v_mfma_f32_32x32x16_bf16 {vr(acc, 16)}, {a}, {xb}, {cc}')
        else:
            sub(f'v_mfma_f32_32x32x16_bf16 {vr(acc, 16)}, {xb}, {a}, {cc}')
        st.refill(idx)
        idx += 1
        main.append('\n'.join(sub.lines))
    st.k = k
    st.vm.k = k
    interleave(k, main, list(filler))
    return idx


def residual(c, acc, half):
    k = c.k
    for l in round_pairs(k, [acc + i for i in range(16)], c.vT):
        k(l)
    unpack16(k, c.vXP, c.vF)
    for i in range(16):
        if half:
            k(f'v_fmac_f32 v{c.vF + i}, 0.5, v{acc + i}')
        else:
            k(f'v_add_f32 v{c.vF + i}, v{c.vF + i}, v{acc + i}')
    for i in range(8):
        k(f'v_cvt_pk_bf16_f32 v{c.vXP + i}, v{c.vF + 2 * i}, v{c.vF + 2 * i + 1}')
    unpack16(k, c.vXP, c.vF)


def gen_k3():
    k = K('oproj_kernel')
    c = RowCtx(k)
    vm, lg = c.vm, c.lg
    end = 'L_k3_end'
    c.prologue(250, end)
    k(f'''
    s_lshl_b32 s18, s2, 14
    s_add_u32 s19, s18, {WS_ATT}
    s_lshl_b32 s21, s16, 11
    s_add_u32 s20, s18, s21
    s_add_u32 s22, s20, {WS_X2}
    s_add_u32 s23, s20, {WS_G}
    s_add_u32 s20, s20, {WS_X1}
    s_mul_i32 s17, s16, {48 * KB}
    s_add_u32 s17, s17, {WP_K3 * KB}
    s_waitcnt lgkmcnt(0)
    ''')
    srd(k, 12, 6, WS_SIZE)
    toks = []
    for kb in range(16):
        k(f'buffer_load_dwordx4 {vr(c.vXN + 4 * kb, 4)}, v{c.vL16}, s[12:15], s19 offen offset:{(kb % 4) * 1024}')
        toks.append(vm.issue())
        if kb % 4 == 3:
            k('s_add_u32 s19, s19, 4096')
    k(f'buffer_load_dwordx4 {vr(c.vXP, 4)}, v{c.vL16}, s[12:15], s20 offen')
    vm.issue()
    k(f'buffer_load_dwordx4 {vr(c.vXP + 4, 4)}, v{c.vL16}, s[12:15], s20 offen offset:1024')
    tx = vm.issue()
    st = Stream(k, vm, c.vRing, c.depth, 48, 17, c.vL16, 12)
    st.prime()
    vm.wait(tx)
    idx = gemm_tile(c, st, 0, c.vAcc)
    residual(c, c.vAcc, False)
    k(f'''
    buffer_store_dwordx4 {vr(c.vXP, 4)}, v{c.vL16}, s[12:15], s22 offen
    buffer_store_dwordx4 {vr(c.vXP + 4, 4)}, v{c.vL16}, s[12:15], s22 offen offset:1024
    ''')
    vm.issue()
    vm.issue()
    c.layernorm()
    A, B = c.vAcc, c.vAcc + 16
    idx = gemm_tile(c, st, idx, A)
    idx = gemm_tile(c, st, idx, B)
    T = c.vT
    for l in round_pairs(k, [A + i for i in range(16)], T):
        k(l)
    for l in round_pairs(k, [B + i for i in range(16)], T):
        k(l)
    for i in range(16):
        k(f'v_mul_f32 v{B + i}, 0x{f2u(-LOG2E):08x}, v{B + i}')
    for i in range(16):
        k(f'v_exp_f32 v{B + i}, v{B + i}')
    for i in range(16):
        k(f'v_add_f32 v{B + i}, 1.0, v{B + i}')
    for i in range(16):
        k(f'v_rcp_f32 v{B + i}, v{B + i}')
    for l in round_pairs(k, [B + i for i in range(16)], T):
        k(l)
    for i in range(16):
        k(f'v_mul_f32 v{A + i}, v{A + i}, v{B + i}')
    for i in range(8):
        k(f'v_cvt_pk_bf16_f32 v{c.vS + i}, v{A + 2 * i}, v{A + 2 * i + 1}')
    k(f'''
    buffer_store_dwordx4 {vr(c.vS, 4)}, v{c.vL16}, s[12:15], s23 offen
    buffer_store_dwordx4 {vr(c.vS + 4, 4)}, v{c.vL16}, s[12:15], s23 offen offset:1024
    ''')
    k.label(end)
    return k, 256, 250, RowCtx.LDS_TOTAL


def gen_k4():
    k = K('convff2_kernel')
    c = RowCtx(k)
    vm, lg = c.vm, c.lg
    end = 'L_k4_end'
    c.prologue(250, end)
    k('s_load_dwordx2 s[4:5], s[0:1], 48')
    k('s_load_dwordx2 s[24:25], s[0:1], 80')
    k(f'''
    s_lshl_b32 s18, s2, 14
    s_lshl_b32 s21, s16, 11
    s_add_u32 s20, s18, s21
    s_add_u32 s20, s20, {WS_X2}
    s_add_u32 s23, s21, {WS_G}
    s_mul_i32 s17, s16, {144 * KB}
    s_add_u32 s17, s17, {WP_K4 * KB}
    s_cmp_ge_u32 s2, 125
    s_cselect_b32 s26, 4000, 0
    s_lshl_b32 s27, s2, 5
    s_sub_u32 s28, s27, s26
    s_lshl_b32 s29, s16, 6            ; w*64 bytes
    v_lshlrev_b32 v10, 3, v9          ; h*8
    v_lshlrev_b32 v11, 9, v8
    v_add_u32 v11, v11, v10
    s_waitcnt lgkmcnt(0)
    ''')
    srd(k, 8, 4, 2560)
    srd(k, 12, 6, WS_SIZE)
    GA = c.vXN
    DW = c.vXN + 40
    gt = []
    for i in range(5):
        k(f'''
        v_add_u32 v12, s28, v8
        v_add_u32 v12, {i - 2}, v12
        v_add_u32 v13, s27, v8
        v_add_u32 v13, {i - 2}, v13
        v_lshrrev_b32 v14, 5, v13
        v_lshlrev_b32 v14, 14, v14
        v_and_b32 v13, 31, v13
        v_lshl_add_u32 v13, v9, 5, v13
        v_lshl_add_u32 v14, v13, 4, v14
        v_mov_b32 v13, 0x80000000
        v_cmp_gt_u32 vcc, 4000, v12
        v_cndmask_b32 v14, v13, v14, vcc
        buffer_load_dwordx4 {vr(GA + 8 * i, 4)}, v14, s[12:15], s23 offen
        buffer_load_dwordx4 {vr(GA + 8 * i + 4, 4)}, v14, s[12:15], s23 offen offset:1024
        ''')
        vm.issue()
        gt.append(vm.issue())
    for i in range(5):
        for q in range(4):
            k(f'buffer_load_dwordx2 {vr(DW + 8 * i + 2 * q, 2)}, v10, s[8:11], s29 offen offset:{512 * i + 16 * q}')
            td = vm.issue()
    k(f'buffer_load_dwordx4 {vr(c.vXP, 4)}, v{c.vL16}, s[12:15], s20 offen')
    vm.issue()
    k(f'buffer_load_dwordx4 {vr(c.vXP + 4, 4)}, v{c.vL16}, s[12:15], s20 offen offset:1024')
    tx = vm.issue()
    st = Stream(k, vm, c.vRing, c.depth, 144, 17, c.vL16, 12)
    st.prime()
    c.vHW = 0
    k(f'''
    s_lshl_b32 s19, s16, 13
    v_add_u32 v12, s19, v{c.vL16}
    v_add_u32 v0, {c.LDS_H}, v12
    v_mov_b32 v{c.vXP + 8 + 16 + 32 - 1}, v11
    ''')
    vRowOff = c.vS + 31
    vm.wait(tx)
    F, S, T = c.vF, c.vS, c.vT
    for i in range(5):
        unpack16(k, GA + 8 * i, S)
        unpack16(k, DW + 8 * i, S + 16)
        dst = F if i == 0 else S
        for e in range(16):
            k(f'v_mul_f32 v{dst + e}, v{S + e}, v{S + 16 + e}')
        for l in round_pairs(k, [dst + e for e in range(16)], T):
            k(l)
        if i > 0:
            for e in range(16):
                k(f'v_add_f32 v{F + e}, v{F + e}, v{S + e}')
            for l in round_pairs(k, [F + e for e in range(16)], T):
                k(l)
    for l in silu_pack(F, S + 16, T):
        k(l)
    k(f'ds_write_b128 v{c.vXnW}, {vr(S + 16, 4)}')
    k(f'ds_write_b128 v{c.vXnW}, {vr(S + 20, 4)} offset:1024')
    k('s_waitcnt lgkmcnt(0)')
    k('s_barrier')
    for kb in range(16):
        k(f'ds_read_b128 {vr(c.vXN + 4 * kb, 4)}, v{c.vXnR} offset:{1024 * kb}')
    k('s_waitcnt lgkmcnt(0)')
    idx = gemm_tile(c, st, 0, c.vAcc)
    residual(c, c.vAcc, False)
    k('s_barrier')
    c.layernorm()
    idx = ff_block(c, st, idx)
    residual(c, c.vAcc, True)
    p = c.layernorm(last=True)
    k(f'''
    v_and_b32 v8, 31, v{c.vL16}
    v_lshrrev_b32 v8, 4, v{c.vL16}
    v_and_b32 v9, 31, v8
    v_lshrrev_b32 v8, 5, v8
    v_lshlrev_b32 v9, 9, v9
    v_lshl_add_u32 v11, v8, 3, v9
    s_lshl_b32 s18, s2, 14
    s_add_u32 s18, s18, s29
    ''')
    srd(k, 8, 24, 4096000)
    for q in range(4):
        k(f'buffer_store_dwordx2 {vr(p + 2 * q, 2)}, v11, s[8:11], s18 offen offset:{16 * q}')
    k.label(end)
    return k, 256, 250, RowCtx.LDS_TOTAL
```

```python
import sys
import struct
from asmgen import *

KB = 1024
MB = 1024 * 1024
WS_WP = 0
WS_X1 = 4 * MB
WS_Q = 8 * MB
WS_KV = 16 * MB
WS_ATT = 24 * MB
WS_X2 = 28 * MB
WS_G = 32 * MB
WS_SIZE = 40 * MB

WP_K1 = 0
WP_K3 = 1408
WP_K4 = 1792

LOG2E = 1.4426950408889634


def f2u(f):
    return struct.unpack('<I', struct.pack('<f', f))[0]


class Cnt:
    def __init__(self, k, name, maxv):
        self.k, self.name, self.maxv = k, name, maxv
        self.issued = 0
        self.done = 0

    def issue(self):
        self.issued += 1
        return self.issued - 1

    def wait(self, tok):
        if tok < self.done:
            return
        n = self.issued - 1 - tok
        n = min(n, self.maxv)
        self.k(f's_waitcnt {self.name}({n})')
        self.done = self.issued - n

    def wait_all(self):
        if self.done < self.issued:
            self.k(f's_waitcnt {self.name}(0)')
            self.done = self.issued


def srd(k, s, ptr, size):
    k(f'''
    s_mov_b32 s{s}, s{ptr}
    s_and_b32 s{s + 1}, s{ptr + 1}, 0xffff
    s_mov_b32 s{s + 2}, {size}
    s_mov_b32 s{s + 3}, 0x20000
    ''')


def gen_k0():
    k = K('pack_kernel')
    mats = [
        ('ff1a', 8, 1024, 256, WP_K1, 176, (2, 7), (0, 3), 0),
        ('ff1b', 16, 256, 1024, WP_K1, 176, (0, 7), (0, 0), 64),
        ('qkv', 24, 768, 256, WP_K1, 176, (0, 7), (3, 3), 128),
        ('wo', 32, 256, 256, WP_K3, 48, (0, 7), (0, 0), 0),
        ('pw1', 40, 512, 256, WP_K3, 48, (0, 7), (3, 1), 16),
        ('pw2', 56, 256, 256, WP_K4, 144, (0, 7), (0, 0), 0),
        ('ff2a', 64, 1024, 256, WP_K4, 144, (2, 7), (0, 3), 16),
        ('ff2b', 72, 256, 1024, WP_K4, 144, (0, 7), (0, 0), 80),
    ]
    NPACK = 368
    NZERO = 24
    k(f'''
    s_cmp_ge_u32 s2, {NPACK + NZERO}
    s_cbranch_scc1 L_pack_end
    s_load_dwordx2 s[6:7], s[0:1], 96
    v_and_b32 v1, 63, v0
    v_lshrrev_b32 v2, 6, v0
    v_and_b32 v3, 31, v0
    v_bfe_u32 v4, v0, 5, 1
    v_readfirstlane_b32 s16, v2
    s_cmp_ge_u32 s2, {NPACK}
    s_cbranch_scc1 L_pack_zero
    ''')
    wg0 = 0
    for i, (nm, arg, N, Kd, base, c1, (s1, m1), (s2_, m2), add) in enumerate(mats):
        nfr = (N // 32) * (Kd // 16)
        nwg = nfr // 8
        lk = 4 if Kd == 256 else 6
        k(f'''
        s_cmp_ge_u32 s2, {wg0 + nwg}
        s_cbranch_scc1 L_pack_next{i}
        s_load_dwordx2 s[4:5], s[0:1], {arg}
        s_sub_u32 s17, s2, {wg0}
        s_lshl_b32 s17, s17, 3
        s_add_u32 s17, s17, s16
        s_lshr_b32 s18, s17, {lk}        ; mt
        s_and_b32 s19, s17, {(1 << lk) - 1}   ; kb
        s_mov_b32 s20, {N * 2}
        s_mov_b32 s21, {N * Kd * 2}      ; size
        s_lshr_b32 s22, s18, {s1}
        s_and_b32 s22, s22, {m1}
        s_mul_i32 s22, s22, {c1}
        s_lshr_b32 s23, s18, {s2_}
        s_and_b32 s23, s23, {m2}
        s_lshl_b32 s23, s23, 4
        s_add_u32 s22, s22, s23
        s_add_u32 s22, s22, s19
        s_add_u32 s22, s22, {base + add}
        s_branch L_pack_common
        ''')
        k.label(f'L_pack_next{i}')
        wg0 += nwg
    assert wg0 == NPACK
    k('s_branch L_pack_end')
    k.label('L_pack_common')
    k('s_waitcnt lgkmcnt(0)')
    k('''
    s_mov_b32 s8, s4
    s_and_b32 s9, s5, 0xffff
    s_mov_b32 s10, s21
    s_mov_b32 s11, 0x20000
    ''')
    srd(k, 12, 6, WS_SIZE)
    k('''
    s_lshl_b32 s24, s19, 4
    v_lshlrev_b32 v5, 2, v4
    v_add_u32 v5, s24, v5
    v_mul_lo_u32 v5, v5, s20
    s_lshl_b32 s25, s18, 5
    v_add_u32 v6, s25, v3
    v_lshlrev_b32 v6, 1, v6
    v_add_u32 v5, v5, v6
    ''')
    rows = [0, 1, 2, 3, 8, 9, 10, 11]
    for j, r in enumerate(rows):
        k(f's_mul_i32 s{30 + j}, s20, {r}')
    for j in range(8):
        k(f'buffer_load_ushort v{16 + j}, v5, s[8:11], s{30 + j} offen')
    k('''
    s_lshl_b32 s22, s22, 10
    v_lshlrev_b32 v7, 4, v1
    s_waitcnt vmcnt(0)
    v_lshl_or_b32 v8, v17, 16, v16
    v_lshl_or_b32 v9, v19, 16, v18
    v_lshl_or_b32 v10, v21, 16, v20
    v_lshl_or_b32 v11, v23, 16, v22
    buffer_store_dwordx4 v[8:11], v7, s[12:15], s22 offen
    s_branch L_pack_end
    ''')
    k.label('L_pack_zero')
    k('s_waitcnt lgkmcnt(0)')
    srd(k, 12, 6, WS_SIZE)
    k(f'''
    s_sub_u32 s17, s2, {NPACK}
    s_mul_i32 s18, s17, 43
    s_lshr_b32 s18, s18, 7            ; bh = z/3   (z<24)
    s_mul_i32 s19, s18, 3
    s_sub_u32 s19, s17, s19           ; z%3
    s_add_u32 s19, s19, 125
    s_lshl_b32 s18, s18, 20
    s_lshl_b32 s19, s19, 13
    s_add_u32 s18, s18, s19
    s_add_u32 s18, s18, {WS_KV}
    v_lshlrev_b32 v7, 4, v0
    v_mov_b32 v8, 0
    v_mov_b32 v9, 0
    v_mov_b32 v10, 0
    v_mov_b32 v11, 0
    buffer_store_dwordx4 v[8:11], v7, s[12:15], s18 offen
    ''')
    k.label('L_pack_end')
    return k, 24, NPACK + NZERO


class Stream:
    def __init__(self, k, vm, ring, depth, total, sreg, vlane16, srdw):
        self.k, self.vm, self.ring, self.depth, self.total = k, vm, ring, depth, total
        self.sreg, self.vl, self.srdw = sreg, vlane16, srdw
        self.tok = {}
        self.next = 0

    def issue_one(self):
        i = self.next
        if i >= self.total:
            return
        slot = i % self.depth
        self.k(f'buffer_load_dwordx4 {vr(self.ring + 4 * slot, 4)}, v{self.vl}, {sr(self.srdw, 4)}, s{self.sreg} '
               f'offen offset:{(i % 4) * 1024}')
        self.tok[i] = self.vm.issue()
        if i % 4 == 3:
            self.k(f's_add_u32 s{self.sreg}, s{self.sreg}, 4096')
        self.next += 1

    def prime(self):
        while self.next < min(self.depth, self.total):
            self.issue_one()

    def get(self, i):
        self.vm.wait(self.tok[i])
        return vr(self.ring + 4 * (i % self.depth), 4)

    def refill(self, i):
        assert self.next <= i + self.depth
        while self.next <= i + self.depth and self.next < self.total:
            self.issue_one()


def unpack16(k, src, dst):
    for i in range(8):
        k(f'v_lshlrev_b32 v{dst + 2 * i}, 16, v{src + i}')
        k(f'v_and_b32 v{dst + 2 * i + 1}, 0xffff0000, v{src + i}')


def round_pairs(k, regs, tmp):
    out = []
    for i in range(0, len(regs), 2):
        a, b = regs[i], regs[i + 1]
        out.append(f'v_cvt_pk_bf16_f32 v{tmp}, v{a}, v{b}')
        out.append(f'v_lshlrev_b32 v{a}, 16, v{tmp}')
        out.append(f'v_and_b32 v{b}, 0xffff0000, v{tmp}')
    return out


class RowCtx:
    LDS_H = 0
    LDS_XN = 65536
    LDS_STAT = 65536 + 16384
    LDS_TOTAL = 4096 + 16384 + 65536

    def __init__(self, k):
        self.k = k
        self.vm = Cnt(k, 'vmcnt', 63)
        self.lg = Cnt(k, 'lgkmcnt', 15)
        self.vL16 = 1
        self.vStW = 2
        self.vStR = 3
        self.vXnW = 4
        self.vXnR = 5
        self.vT = 6
        self.vXP = 16
        self.vF = 24
        self.vS = 40
        self.vXN = 72
        self.vAcc = 136
        self.vRing = 168
        self.depth = 22

    def prologue(self, ntiles, end):
        k = self.k
        k(f'''
        s_cmp_ge_u32 s2, {ntiles}
        s_cbranch_scc1 {end}
        s_load_dwordx2 s[6:7], s[0:1], 96
        v_lshrrev_b32 v6, 6, v0
        v_and_b32 v7, 63, v0
        v_readfirstlane_b32 s16, v6
        v_lshlrev_b32 v{self.vL16}, 4, v7
        v_and_b32 v8, 31, v0
        v_bfe_u32 v9, v0, 5, 1
        v_lshlrev_b32 v{self.vStR}, 3, v8
        v_lshlrev_b32 v10, 1, v6
        v_add_u32 v10, v10, v9
        v_lshlrev_b32 v10, 8, v10
        v_add_u32 v{self.vStR}, {self.LDS_STAT}, v{self.vStR}
        v_add_u32 v{self.vStW}, v10, v{self.vStR}
        v_add_u32 v{self.vXnR}, {self.LDS_XN}, v{self.vL16}
        v_lshlrev_b32 v10, 11, v6
        v_add_u32 v{self.vXnW}, v10, v{self.vL16}
        v_add_u32 v{self.vXnW}, {self.LDS_XN}, v{self.vXnW}
        ''')

    def layernorm(self, last=False):
        k, lg = self.k, self.lg
        F, S, T = self.vF, self.vS, self.vT
        k(f'v_add_f32 v{T}, v{F}, v{F + 1}')
        k(f'v_add_f32 v{T + 1}, v{F + 2}, v{F + 3}')
        k(f'v_add_f32 v{T + 2}, v{F + 4}, v{F + 5}')
        k(f'v_add_f32 v{T + 3}, v{F + 6}, v{F + 7}')
        for i in range(8, 16, 4):
            k(f'v_add_f32 v{T}, v{T}, v{F + i}')
            k(f'v_add_f32 v{T + 1}, v{T + 1}, v{F + i + 1}')
            k(f'v_add_f32 v{T + 2}, v{T + 2}, v{F + i + 2}')
            k(f'v_add_f32 v{T + 3}, v{T + 3}, v{F + i + 3}')
        k(f'v_add_f32 v{T}, v{T}, v{T + 1}')
        k(f'v_add_f32 v{T + 2}, v{T + 2}, v{T + 3}')
        k(f'v_add_f32 v{T}, v{T}, v{T + 2}')
        k(f'v_mul_f32 v{T}, 0x3d800000, v{T}')
        for i in range(4):
            k(f'v_sub_f32 v{T + 2 + i}, v{F + i}, v{T}')
        for i in range(4):
            k(f'v_mul_f32 v{T + 6 + i}, v{T + 2 + i}, v{T + 2 + i}')
        for i0 in range(4, 16, 4):
            for i in range(4):
                k(f'v_sub_f32 v{T + 2 + i}, v{F + i0 + i}, v{T}')
            for i in range(4):
                k(f'v_fmac_f32 v{T + 6 + i}, v{T + 2 + i}, v{T + 2 + i}')
        k(f'v_add_f32 v{T + 6}, v{T + 6}, v{T + 7}')
        k(f'v_add_f32 v{T + 8}, v{T + 8}, v{T + 9}')
        k(f'v_add_f32 v{T + 1}, v{T + 6}, v{T + 8}')
        k(f'ds_write_b64 v{self.vStW}, {vr(T, 2)}')
        lg.issue()
        lg.wait_all()
        k('s_barrier')
        for g in range(16):
            k(f'ds_read_b64 {vr(S + 2 * g, 2)}, v{self.vStR} offset:{256 * g}')
            lg.issue()
        lg.wait_all()
        k(f'v_add_f32 v{T}, v{S}, v{S + 2}')
        k(f'v_add_f32 v{T + 1}, v{S + 4}, v{S + 6}')
        k(f'v_add_f32 v{T + 2}, v{S + 1}, v{S + 3}')
        k(f'v_add_f32 v{T + 3}, v{S + 5}, v{S + 7}')
        for g in range(4, 16, 4):
            k(f'v_add_f32 v{T}, v{T}, v{S + 2 * g}')
            k(f'v_add_f32 v{T + 1}, v{T + 1}, v{S + 2 * g + 2}')
            k(f'v_add_f32 v{T + 2}, v{T + 2}, v{S + 2 * g + 1}')
            k(f'v_add_f32 v{T + 3}, v{T + 3}, v{S + 2 * g + 3}')
            k(f'v_add_f32 v{T}, v{T}, v{S + 2 * g + 4}')
            k(f'v_add_f32 v{T + 1}, v{T + 1}, v{S + 2 * g + 6}')
            k(f'v_add_f32 v{T + 2}, v{T + 2}, v{S + 2 * g + 5}')
            k(f'v_add_f32 v{T + 3}, v{T + 3}, v{S + 2 * g + 7}')
        k(f'v_add_f32 v{T}, v{T}, v{T + 1}')
        k(f'v_add_f32 v{T + 2}, v{T + 2}, v{T + 3}')
        k(f'v_mul_f32 v{T}, 0x3d800000, v{T}')
        for g in range(16):
            k(f'v_sub_f32 v{S + 2 * g}, v{S + 2 * g}, v{T}')
        k(f'v_mul_f32 v{T + 3}, v{S}, v{S}')
        k(f'v_mul_f32 v{T + 4}, v{S + 2}, v{S + 2}')
        for g in range(2, 16, 2):
            k(f'v_fmac_f32 v{T + 3}, v{S + 2 * g}, v{S + 2 * g}')
            k(f'v_fmac_f32 v{T + 4}, v{S + 2 * g + 2}, v{S + 2 * g + 2}')
        k(f'v_add_f32 v{T + 3}, v{T + 3}, v{T + 4}')
        k(f'v_fmac_f32 v{T + 2}, 0x41800000, v{T + 3}')
        k(f'v_mul_f32 v{T + 2}, 0x3b800000, v{T + 2}')
        k(f'v_cvt_pk_bf16_f32 v{T + 4}, v{T}, v{T + 2}')
        k(f'v_lshlrev_b32 v{T}, 16, v{T + 4}')
        k(f'v_and_b32 v{T + 2}, 0xffff0000, v{T + 4}')
        k(f'v_add_f32 v{T + 2}, 0x3727c5ac, v{T + 2}')
        k(f'v_cvt_pk_bf16_f32 v{T + 4}, v{T + 2}, v{T + 2}')
        k(f'v_lshlrev_b32 v{T + 2}, 16, v{T + 4}')
        k(f'v_sqrt_f32 v{T + 2}, v{T + 2}')
        k(f'v_cvt_pk_bf16_f32 v{T + 4}, v{T + 2}, v{T + 2}')
        k(f'v_lshlrev_b32 v{T + 2}, 16, v{T + 4}')
        k(f'v_rcp_f32 v{T + 2}, v{T + 2}')
        for i in range(16):
            k(f'v_sub_f32 v{S + i}, v{F + i}, v{T}')
        for l in round_pairs(k, [S + i for i in range(16)], T + 4):
            k(l)
        for i in range(16):
            k(f'v_mul_f32 v{S + i}, v{S + i}, v{T + 2}')
        for i in range(8):
            k(f'v_cvt_pk_bf16_f32 v{S + 16 + i}, v{S + 2 * i}, v{S + 2 * i + 1}')
        if last:
            return S + 16
        k(f'ds_write_b128 v{self.vXnW}, {vr(S + 16, 4)}')
        lg.issue()
        k(f'ds_write_b128 v{self.vXnW}, {vr(S + 20, 4)} offset:1024')
        lg.issue()
        lg.wait_all()
        k('s_barrier')
        for kb in range(16):
            k(f'ds_read_b128 {vr(self.vXN + 4 * kb, 4)}, v{self.vXnR} offset:{1024 * kb}')
            lg.issue()
        lg.wait_all()


def interleave(k, main, filler, per=None):
    n = len(main)
    f = list(filler)
    per = per or -(-len(f) // max(n, 1))
    for g in main:
        k(g)
        for _ in range(per):
            if f:
                k(f.pop(0))
    for x in f:
        k(x)


def silu_pack(acc, dst, t0):
    L = []
    for i in range(0, 16, 2):
        a, b = acc + i, acc + i + 1
        ta, tb = t0 + 1 + (i & 2), t0 + 2 + (i & 2)
        L += [f'v_cvt_pk_bf16_f32 v{t0}, v{a}, v{b}',
              f'v_lshlrev_b32 v{a}, 16, v{t0}',
              f'v_and_b32 v{b}, 0xffff0000, v{t0}',
              f'v_mul_f32 v{ta}, 0x{f2u(-LOG2E):08x}, v{a}',
              f'v_mul_f32 v{tb}, 0x{f2u(-LOG2E):08x}, v{b}',
              f'v_exp_f32 v{ta}, v{ta}',
              f'v_exp_f32 v{tb}, v{tb}',
              f'v_add_f32 v{ta}, 1.0, v{ta}',
              f'v_add_f32 v{tb}, 1.0, v{tb}',
              f'v_rcp_f32 v{ta}, v{ta}',
              f'v_rcp_f32 v{tb}, v{tb}',
              f'v_mul_f32 v{a}, v{a}, v{ta}',
              f'v_mul_f32 v{b}, v{b}, v{tb}',
              f'v_cvt_pk_bf16_f32 v{dst + i // 2}, v{a}, v{b}']
    return L


def ff_block(c, st, widx0):
    k, lg = c.k, c.lg
    idx = widx0
    pend = []
    HP = c.vS
    for mt in range(4):
        acc = c.vAcc + 16 * (mt & 1)
        main = []
        for kb in range(16):
            sub = K('tmp')
            st.k = sub
            st.vm.k = sub
            a = st.get(idx)
            cc = '0' if kb == 0 else vr(acc, 16)
            sub(f'v_mfma_f32_32x32x16_bf16 {vr(acc, 16)}, {a}, {vr(c.vXN + 4 * kb, 4)}, {cc}')
            st.refill(idx)
            idx += 1
            main.append('\n'.join(sub.lines))
        st.k = k
        st.vm.k = k
        interleave(k, main, pend)
        hp = HP + 16 * (mt & 1)
        pend = silu_pack(acc, hp, c.vT + 5 * (mt & 1))
        pend.append(f'ds_write_b128 v{c.vHW}, {vr(hp, 4)} offset:{2048 * mt}')
        pend.append(f'ds_write_b128 v{c.vHW}, {vr(hp + 4, 4)} offset:{2048 * mt + 1024}')
    for x in pend:
        k(x)
    k('s_waitcnt lgkmcnt(0)')
    lg.done = lg.issued
    k('s_barrier')
    NB = 8
    toks = {}

    def rd(kb):
        k(f'ds_read_b128 {vr(c.vXN + 4 * (kb % NB), 4)}, v{c.vL16} offset:{c.LDS_H + 1024 * kb}')
        toks[kb] = lg.issue()
    for kb in range(NB):
        rd(kb)
    acc = c.vAcc
    for kb in range(64):
        a = st.get(idx)
        lg.wait(toks[kb])
        cc = '0' if kb == 0 else vr(acc, 16)
        k(f'v_mfma_f32_32x32x16_bf16 {vr(acc, 16)}, {a}, {vr(c.vXN + 4 * (kb % NB), 4)}, {cc}')
        st.refill(idx)
        idx += 1
        if kb + NB < 64:
            rd(kb + NB)
    return idx


def gen_k1():
    k = K('ff1qkv_kernel')
    c = RowCtx(k)
    vm, lg = c.vm, c.lg
    end = 'L_k1_end'
    c.prologue(250, end)
    c.vHW = 0
    k('s_load_dwordx2 s[4:5], s[0:1], 0')
    k(f'''
    v_lshlrev_b32 v11, 9, v8
    v_lshlrev_b32 v12, 3, v9
    v_add_u32 v11, v11, v12
    s_lshl_b32 s18, s2, 14
    s_lshl_b32 s19, s16, 6
    s_add_u32 s18, s18, s19
    s_mul_i32 s17, s16, {176 * KB}
    s_waitcnt lgkmcnt(0)
    ''')
    srd(k, 8, 4, 4096000)
    srd(k, 12, 6, WS_SIZE)
    xt = []
    for i in range(4):
        k(f'buffer_load_dwordx2 {vr(c.vXP + 2 * i, 2)}, v11, s[8:11], s18 offen offset:{16 * i}')
        xt.append(vm.issue())
    st = Stream(k, vm, c.vRing, c.depth, 176, 17, c.vL16, 12)
    st.prime()
    c.vHW = 0
    k(f'''
    s_lshl_b32 s19, s16, 13
    v_add_u32 v12, s19, v{c.vL16}
    v_add_u32 v0, {c.LDS_H}, v12
    ''')
    vm.wait(xt[-1])
    unpack16(k, c.vXP, c.vF)
    c.layernorm()
    idx = ff_block(c, st, 0)
    acc = c.vAcc
    for l in round_pairs(k, [acc + i for i in range(16)], c.vT):
        k(l)
    unpack16(k, c.vXP, c.vF)
    for i in range(16):
        k(f'v_fmac_f32 v{c.vF + i}, 0.5, v{acc + i}')
    for i in range(8):
        k(f'v_cvt_pk_bf16_f32 v{c.vXP + i}, v{c.vF + 2 * i}, v{c.vF + 2 * i + 1}')
    unpack16(k, c.vXP, c.vF)
    k(f'''
    s_lshl_b32 s20, s2, 14
    s_lshl_b32 s21, s16, 11
    s_add_u32 s20, s20, s21
    s_add_u32 s20, s20, {WS_X1}
    buffer_store_dwordx4 {vr(c.vXP, 4)}, v{c.vL16}, s[12:15], s20 offen
    buffer_store_dwordx4 {vr(c.vXP + 4, 4)}, v{c.vL16}, s[12:15], s20 offen offset:1024
    ''')
    vm.issue()
    vm.issue()
    c.layernorm()
    k(f'''
    s_cmp_ge_u32 s2, 125
    s_cselect_b32 s22, 1, 0
    s_mul_i32 s23, s22, 125
    s_sub_u32 s23, s2, s23
    s_lshl_b32 s22, s22, 2
    s_lshr_b32 s24, s16, 1
    s_add_u32 s22, s22, s24          ; bh
    s_and_b32 s25, s16, 1            ; d half
    s_lshl_b32 s25, s25, 11          ; *2KB
    s_lshl_b32 s26, s22, 19          ; bh*512KB
    s_lshl_b32 s27, s23, 12          ; tile*4KB
    s_add_u32 s26, s26, s27
    s_add_u32 s26, s26, s25
    s_add_u32 s26, s26, {WS_Q}       ; Q dest
    s_lshl_b32 s27, s22, 20          ; bh*1MB
    s_lshl_b32 s28, s23, 13          ; tile*8KB
    s_add_u32 s27, s27, s28
    s_add_u32 s27, s27, s25
    s_add_u32 s27, s27, {WS_KV}      ; K dest
    s_add_u32 s28, s27, 4096         ; V dest
    ''')
    pend = []
    QS = 0.125 * LOG2E
    for t in range(3):
        acc = c.vAcc + 16 * (t & 1)
        main = []
        for kb in range(16):
            sub = K('tmp')
            st.k = sub
            st.vm.k = sub
            a = st.get(idx)
            cc = '0' if kb == 0 else vr(acc, 16)
            xb = vr(c.vXN + 4 * kb, 4)
            if t < 2:
                sub(f'v_mfma_f32_32x32x16_bf16 {vr(acc, 16)}, {a}, {xb}, {cc}')
            else:
                sub(f'v_mfma_f32_32x32x16_bf16 {vr(acc, 16)}, {xb}, {a}, {cc}')
            st.refill(idx)
            idx += 1
            main.append('\n'.join(sub.lines))
        st.k = k
        st.vm.k = k
        interleave(k, main, pend)
        hp = c.vS + 16 * (t & 1)
        pend = []
        if t == 0:
            for i in range(16):
                pend.append(f'v_mul_f32 v{acc + i}, 0x{f2u(QS):08x}, v{acc + i}')
        for i in range(8):
            pend.append(f'v_cvt_pk_bf16_f32 v{hp + i}, v{acc + 2 * i}, v{acc + 2 * i + 1}')
        pend.append(f'buffer_store_dwordx4 {vr(hp, 4)}, v{c.vL16}, s[12:15], s{26 + t} offen')
        pend.append(f'buffer_store_dwordx4 {vr(hp + 4, 4)}, v{c.vL16}, s[12:15], s{26 + t} offen offset:1024')
        if t < 2:
            stores = pend[-2:]
            pend = pend[:-2]
            pend_st = stores
        else:
            pend_st = pend[-2:]
            pend = pend[:-2]
        for x in pend:
            k(x)
        for x in pend_st:
            k(x)
            vm.issue()
        pend = []
    k.label(end)
    return k, 256, 250, RowCtx.LDS_TOTAL


def build(path):
    hdr = open('standalone__conformer_family_zipformer__speech.s.ref').read().split(
        '; Override')[0]
    ks = []
    k0, vg0, g0 = gen_k0()
    ks.append((k0, vg0, g0, 512, 0))
    k1, vg1, g1, lds1 = gen_k1()
    ks.append((k1, vg1, g1, 512, lds1))
    from gen_attn import gen_k2
    k2, vg2, g2, lds2 = gen_k2()
    ks.append((k2, vg2, g2, 512, lds2))
    from gen_k34 import gen_k3, gen_k4
    k3, vg3, g3, lds3 = gen_k3()
    ks.append((k3, vg3, g3, 512, lds3))
    k4, vg4, g4, lds4 = gen_k4()
    ks.append((k4, vg4, g4, 512, lds4))
    open(path, 'w').write(module_text(hdr, ks))


if __name__ == '__main__':
    build(sys.argv[1] if len(sys.argv) > 1 else 'k.s')
```

```python
from asmgen import *
from gen import *

def gen_k2(nodma=False, nobar=False, novalu=False, nomfma=False, name='attn_kernel', stamp=False, nopk=True, dot=False, spread=True):
    k = K(name)
    end = 'L_k2_end_' + name
    vL16, vA0, vA1 = 1, 2, 3
    vL = {'a': 4, 'b': 6}
    vL2 = {'a': 5, 'b': 7}
    vM = {'a': 8, 'b': 9}
    vT = 10
    vTS = {'a': 14, 'b': 14}
    vOnes = 0
    vQ = {'a': 16, 'b': 32}
    vS = {'a': 48, 'b': 64}
    vN = {'a': 80, 'b': 96}
    vO = {'a': 112, 'b': 144}
    vP = {'a': 176, 'b': 184}
    vK = 192
    vV = 224
    NST = 4
    rare = []
    k(f'''
    s_cmp_ge_u32 s2, 256
    s_cbranch_scc1 {end}
    s_load_dwordx2 s[6:7], s[0:1], 96
    s_load_dwordx2 s[38:39], s[0:1], 88
    s_memtime s[40:41]
    s_memrealtime s[48:49]
    v_lshrrev_b32 v10, 6, v0
    v_and_b32 v11, 63, v0
    v_readfirstlane_b32 s16, v10
    v_lshlrev_b32 v{vL16}, 4, v11
    s_and_b32 s17, s16, 1            ; qg
    s_lshr_b32 s18, s16, 1           ; kq
    s_and_b32 s19, s2, 7             ; bh
    s_lshr_b32 s20, s2, 3            ; qb
    s_lshl_b32 s21, s20, 2
    s_lshl_b32 s22, s17, 1
    s_add_u32 s21, s21, s22
    s_add_u32 s22, s21, 1            ; tile b
    s_min_u32 s23, s21, 124
    s_min_u32 s24, s22, 124
    s_lshl_b32 s25, s19, 19
    s_add_u32 s25, s25, {WS_Q}
    s_lshl_b32 s23, s23, 12
    s_lshl_b32 s24, s24, 12
    s_add_u32 s23, s23, s25          ; Q a offset
    s_add_u32 s24, s24, s25          ; Q b offset
    s_lshl_b32 s26, s19, 20
    s_lshl_b32 s27, s18, 18
    s_add_u32 s26, s26, s27
    s_lshl_b32 s27, s17, 12
    s_add_u32 s26, s26, s27
    s_add_u32 s26, s26, {WS_KV}
    s_xor_b32 s27, s17, 1
    s_lshl_b32 s27, s27, 13
    s_add_u32 s28, s26, s27
    s_lshl_b32 s27, s18, 13
    s_lshl_b32 s29, s17, 12
    s_add_u32 s27, s27, s29
    s_add_u32 s32, s27, 0
    s_add_u32 s33, s27, 32768
    s_add_u32 s34, s27, 65536
    s_add_u32 s35, s27, 98304
    s_lshl_b32 s27, s18, 13
    v_add_u32 v{vA0}, s27, v{vL16}
    v_add_u32 v{vA1}, 0x10000, v{vA0}
    s_waitcnt lgkmcnt(0)
    ''')
    srd(k, 12, 6, WS_SIZE)
    for x in 'ab':
        for kb in range(4):
            k(f'buffer_load_dwordx4 {vr(vQ[x] + 4 * kb, 4)}, v{vL16}, s[12:15], s{23 if x == "a" else 24} offen offset:{1024 * kb}')
    k('s_mov_b32 m0, s35')
    for j in range(4):
        k(f'buffer_load_dwordx4 v{vL16}, s[12:15], s26 offen offset:{1024 * j} lds')

    def dma_list(stage):
        L = [f's_mov_b32 m0, s{32 + stage % NST}\nbuffer_load_dwordx4 v{vL16}, s[12:15], s28 offen lds']
        for j in range(1, 4):
            L.append(f'buffer_load_dwordx4 v{vL16}, s[12:15], s28 offen offset:{1024 * j} lds')
        L[-1] += '\ns_add_u32 s28, s28, 8192'
        return L

    def dma(stage):
        for l in dma_list(stage):
            k(l)
    for st in range(3):
        dma(st)
    for x in 'ab':
        k(f'v_mov_b32 v{vL[x]}, 0')
        k(f'v_mov_b32 v{vL2[x]}, 0')
        k(f'v_mov_b32 v{vM[x]}, 0')
        for i in range(16):
            k(f'v_mov_b32 v{vN[x] + i}, 0')
        for i in range(32):
            k(f'v_mov_b32 v{vO[x] + i}, 0')
    k(f'v_mov_b32 v{vOnes}, 0x3f803f80')
    k('s_waitcnt vmcnt(12)')
    k('s_barrier')

    def lds_addr(slot, off):
        a = slot * 32768 + off
        return (vA0, a) if a < 65536 else (vA1, a - 65536)

    def rdK(par, slot):
        L = []
        for j in range(4):
            v, o = lds_addr(slot, 1024 * j)
            L.append(f'ds_read_b128 {vr(vK + 16 * par + 4 * j, 4)}, v{v} offset:{o}')
        return L

    def rdV(par, slot):
        L = []
        for j in range(4):
            v, o = lds_addr(slot, 4096 + 1024 * j)
            L.append(f'ds_read_b128 {vr(vV + 16 * par + 4 * j, 4)}, v{v} offset:{o}')
        return L

    def qk(x, par):
        L = []
        for kb in range(4):
            cc = vr(vN[x], 16) if kb == 0 else vr(vS[x], 16)
            L.append(f'v_mfma_f32_32x32x16_bf16 {vr(vS[x], 16)}, {vr(vK + 16 * par + 4 * kb, 4)}, {vr(vQ[x] + 4 * kb, 4)}, {cc}')
        return L

    def pv(x, par):
        L = []
        for s in range(2):
            for dt in range(2):
                o = vr(vO[x] + 16 * dt, 16)
                L.append(f'v_mfma_f32_32x32x16_bf16 {o}, {vr(vV + 16 * par + 8 * dt + 4 * s, 4)}, {vr(vP[x] + 4 * s, 4)}, {o}')
        return L

    def rescale_block(x, init):
        S, N, O = vS[x], vN[x], vO[x]
        L = [f'v_mov_b32 v{vT + 1}, v{vT}',
             f'v_mov_b32 v{vT + 2}, v{vT}',
             f's_nop 1',
             f'v_permlane32_swap_b32 v{vT + 1}, v{vT + 2}',
             f'v_max_f32 v{vT + 1}, v{vT + 1}, v{vT + 2}']
        if not init:
            L.append(f'v_max_f32 v{vT + 1}, 0, v{vT + 1}')
        L.append(f'v_add_f32 v{vM[x]}, v{vM[x]}, v{vT + 1}')
        for i in range(16):
            L.append(f'v_sub_f32 v{S + i}, v{S + i}, v{vT + 1}')
        for i in range(16):
            L.append(f'v_sub_f32 v{N + i}, v{N + i}, v{vT + 1}')
        if not init:
            L.append(f'v_sub_f32 v{vT + 2}, 0, v{vT + 1}')
            L.append(f'v_exp_f32 v{vT + 2}, v{vT + 2}')
            L.append(f's_nop 0')
            L.append(f'v_mul_f32 v{vL[x]}, v{vL[x]}, v{vT + 2}')
            L.append(f'v_mul_f32 v{vL2[x]}, v{vL2[x]}, v{vT + 2}')
            for i in range(32):
                L.append(f'v_mul_f32 v{O + i}, v{O + i}, v{vT + 2}')
        return L

    def maxchain(x):
        S = vS[x]
        L = [f'v_max3_f32 v{vT}, v{S}, v{S + 1}, v{S + 2}']
        for i in range(3, 15, 2):
            L.append(f'v_max3_f32 v{vT}, v{vT}, v{S + i}, v{S + i + 1}')
        L.append(f'v_max_f32 v{vT}, v{vT}, v{S + 15}')
        return L

    def expsum(x):
        S = vS[x]
        ts = vTS[x]
        L = []

        def post(j):
            L.append(f'v_cvt_pk_bf16_f32 v{vP[x] + j // 2}, v{S + j}, v{S + j + 1}')
            if dot:
                if j >= 2:
                    jj = j - 2
                    cc = '0' if jj == 0 else f'v{ts}'
                    L.append(f'v_dot2_f32_bf16 v{ts}, v{vP[x] + jj // 2}, v{vOnes}, {cc}')
            elif nopk:
                if j == 2:
                    L.append(f'v_add_f32 v{ts}, v{S}, v{S + 2}')
                    L.append(f'v_add_f32 v{ts + 1}, v{S + 1}, v{S + 3}')
                elif j > 2:
                    L.append(f'v_add_f32 v{ts}, v{ts}, v{S + j}')
                    L.append(f'v_add_f32 v{ts + 1}, v{ts + 1}, v{S + j + 1}')
            elif j == 2:
                L.append(f'v_pk_add_f32 {vr(ts, 2)}, {vr(S, 2)}, {vr(S + 2, 2)}')
            elif j > 2:
                L.append(f'v_pk_add_f32 {vr(ts, 2)}, {vr(ts, 2)}, {vr(S + j, 2)}')
        for i in range(0, 16, 2):
            L.append(f'v_exp_f32 v{S + i}, v{S + i}')
            L.append(f'v_exp_f32 v{S + i + 1}, v{S + i + 1}')
            if i >= 2:
                post(i - 2)
        post(14)
        if dot:
            L.append(f'v_dot2_f32_bf16 v{ts}, v{vP[x] + 7}, v{vOnes}, v{ts}')
            L.append('s_nop 2')
        return L

    def softmax(x, init, par):
        ts = vTS[x]
        L = []
        if init:
            L += maxchain(x)
            L.append('\n'.join(rescale_block(x, True)))
            L += expsum(x)
        else:
            L += expsum(x)
            lab = k.newlabel('Lrs')
            if not dot:
                L.append(f'v_add_f32 v{vT + 3}, v{ts}, v{ts + 1}')
            L.append(f'v_cmp_lt_f32 vcc, 0x44800000, v{ts if dot else vT + 3}\ns_cbranch_vccnz {lab}\n{lab}_ret:')
            rare.append((lab, qk(x, par) + ['s_nop 12'] + maxchain(x) + rescale_block(x, False) + expsum(x)))
        if dot:
            L.append(f'v_add_f32 v{vL[x]}, v{vL[x]}, v{ts}')
        else:
            L.append(f'v_add_f32 v{vL[x]}, v{vL[x]}, v{ts}')
            L.append(f'v_add_f32 v{vL2[x]}, v{vL2[x]}, v{ts + 1}')
        return L

    def emit_mix(mf, va, pre=()):
        pre = list(pre)
        if not spread:
            for p in pre:
                k(p)
            pre = []
        if novalu:
            va = [x for x in va if 'v_cmp' in x or '\n' in x]
        if nomfma:
            mf = []
        n = len(mf)
        per = len(va) / max(n, 1)
        pper = -(-len(pre) // max(n - 1, 1))
        vi = 0

        def put(item):
            for l in item.split('\n'):
                if l.endswith(':'):
                    k.label(l[:-1])
                else:
                    k(l)
        for m in range(n):
            k(mf[m])
            for _ in range(pper):
                if pre:
                    put(pre.pop(0))
            tgt = int(round(per * (m + 1)))
            while vi < min(tgt, len(va)):
                put(va[vi])
                vi += 1
        for p in pre:
            put(p)
        while vi < len(va):
            put(va[vi])
            vi += 1

    def setinf(x):
        lab = k.newlabel('Lni')
        k(f's_cmp_eq_u32 s18, 3')
        k(f's_cbranch_scc0 {lab}')
        for i in range(16):
            k(f'v_mov_b32 v{vN[x] + i}, 0xff800000')
        k.label(lab)

    for l in rdK(0, 3):
        k(l)
    k('s_waitcnt lgkmcnt(0)')
    for l in qk('a', 0):
        k(l)

    def iteration(i, imod, first=False):
        par = imod & 1
        npar = par ^ 1
        last = (i == 31)
        if i is None or i <= 29:
            k('s_waitcnt vmcnt(8)')
        elif i == 30:
            k('s_waitcnt vmcnt(4)')
        else:
            k('s_waitcnt vmcnt(0)')
        if not nobar:
            k('s_barrier')
        dl = []
        if (i is None or i + 3 <= 31) and not nodma:
            dl = dma_list(imod + 3)
        pre = rdV(par, imod)
        if not last:
            pre = rdK(npar, imod) + pre
        pre = pre + dl
        if i == 29:
            setinf('b')
        mf = qk('b', par) + ([] if first else pv('b', npar))
        emit_mix(mf, softmax('a', first, par), pre)
        if i == 28:
            setinf('a')
        k('s_waitcnt lgkmcnt(0)')
        mf = ([] if last else qk('a', npar)) + pv('a', par)
        emit_mix(mf, softmax('b', first, par))

    if stamp:
        k('s_memtime s[42:43]')
    iteration(0, 0, first=True)
    k('s_mov_b32 s30, 6')
    lp = 'L_k2_loop_' + name
    k.label(lp)
    for im in (1, 2, 3, 0):
        iteration(None, im)
    k(f'''
    s_sub_u32 s30, s30, 1
    s_cmp_lg_u32 s30, 0
    s_cbranch_scc1 {lp}
    ''')
    for i in range(25, 32):
        iteration(i, i % 4)
    if stamp:
        k('s_memtime s[44:45]')
    for l in pv('b', 1):
        k(l)
    for x in 'ab':
        k(f'v_add_f32 v{vL[x]}, v{vL[x]}, v{vL2[x]}')
        k(f'v_mov_b32 v{vT}, v{vL[x]}')
        k(f'v_mov_b32 v{vT + 1}, v{vL[x]}')
        k('s_nop 1')
        k(f'v_permlane32_swap_b32 v{vT}, v{vT + 1}')
        k(f'v_add_f32 v{vL[x]}, v{vT}, v{vT + 1}')
    k('s_barrier')
    k(f'''
    s_lshl_b32 s31, s16, 14
    v_add_u32 v{vA0}, s31, v{vL16}
    s_lshl_b32 s31, s16, 10
    s_add_u32 s31, s31, 0x20000
    v_lshrrev_b32 v{vA1}, 1, v{vL16}
    v_add_u32 v{vA1}, s31, v{vA1}
    ''')
    for q in range(16):
        k(f'ds_write_b128 v{vA0}, {vr(vO["a"] + 4 * q, 4)} offset:{1024 * q}')
    for xi, x in enumerate('ab'):
        k(f'v_mov_b32 v{vT}, v{vM[x]}')
        k(f'v_mov_b32 v{vT + 1}, v{vL[x]}')
        k(f'ds_write_b64 v{vA1}, {vr(vT, 2)} offset:{512 * xi}')
    k('s_waitcnt lgkmcnt(0)')
    k('s_barrier')
    k(f'''
    s_lshl_b32 s31, s17, 14
    s_lshl_b32 s36, s18, 12
    s_add_u32 s31, s31, s36
    v_add_u32 v{vA0}, s31, v{vL16}
    v_add_u32 v{vK}, 0x10000, v{vA0}
    s_lshl_b32 s31, s17, 10
    s_lshr_b32 s36, s18, 1
    s_lshl_b32 s36, s36, 9
    s_add_u32 s31, s31, s36
    s_add_u32 s31, s31, 0x20000
    v_lshrrev_b32 v{vA1}, 1, v{vL16}
    v_add_u32 v{vA1}, s31, v{vA1}
    ''')
    R0 = 48
    for kp in range(4):
        k(f'ds_read_b64 {vr(16 + 2 * kp, 2)}, v{vA1} offset:{2048 * kp}')
    for kp in range(4):
        for q in range(4):
            a = kp * 32768 + q * 1024
            v, o = (vA0, a) if a < 65536 else (vK, a - 65536)
            k(f'ds_read_b128 {vr(R0 + 16 * kp + 4 * q, 4)}, v{v} offset:{o}')
    k('s_waitcnt lgkmcnt(0)')
    k(f'''
    v_max_f32 v24, v16, v18
    v_max3_f32 v24, v24, v20, v22
    v_sub_f32 v25, v16, v24
    v_sub_f32 v26, v18, v24
    v_sub_f32 v27, v20, v24
    v_sub_f32 v28, v22, v24
    v_exp_f32 v25, v25
    v_exp_f32 v26, v26
    v_exp_f32 v27, v27
    v_exp_f32 v28, v28
    s_nop 0
    v_mul_f32 v29, v25, v17
    v_fmac_f32 v29, v26, v19
    v_fmac_f32 v29, v27, v21
    v_fmac_f32 v29, v28, v23
    v_rcp_f32 v29, v29
    s_nop 0
    v_mul_f32 v25, v25, v29
    v_mul_f32 v26, v26, v29
    v_mul_f32 v27, v27, v29
    v_mul_f32 v28, v28, v29
    ''')
    for i in range(16):
        k(f'v_mul_f32 v{R0 + i}, v{R0 + i}, v25')
    for kp in range(1, 4):
        for i in range(16):
            k(f'v_fmac_f32 v{R0 + i}, v{R0 + 16 * kp + i}, v{25 + kp}')
    for i in range(8):
        k(f'v_cvt_pk_bf16_f32 v{32 + i}, v{R0 + 2 * i}, v{R0 + 2 * i + 1}')
    if stamp:
        k('''
        s_memtime s[46:47]
        s_memrealtime s[50:51]
        s_waitcnt lgkmcnt(0)
        s_sub_u32 s42, s42, s40
        s_sub_u32 s44, s44, s40
        s_sub_u32 s46, s46, s40
        s_sub_u32 s50, s50, s48
        s_mov_b32 s52, s38
        s_and_b32 s53, s39, 0xffff
        s_mov_b32 s54, 256
        s_mov_b32 s55, 0x20000
        v_mov_b32 v40, s42
        v_mov_b32 v41, s44
        v_mov_b32 v42, s46
        v_mov_b32 v43, s50
        s_lshl_b32 s56, s2, 3
        s_add_u32 s56, s56, s16
        s_lshl_b32 s56, s56, 4
        v_mov_b32 v44, 0
        buffer_store_dwordx4 v[40:43], v44, s[52:55], s56 offen
        ''')
    k(f'''
    s_lshr_b32 s36, s18, 1
    s_add_u32 s36, s36, s21           ; tile
    s_cmp_gt_u32 s36, 124
    s_cbranch_scc1 {end}
    s_lshr_b32 s37, s19, 2            ; b
    s_mul_i32 s37, s37, 125
    s_add_u32 s36, s36, s37
    s_lshl_b32 s36, s36, 14
    s_and_b32 s37, s19, 3             ; head
    s_lshl_b32 s37, s37, 12
    s_add_u32 s36, s36, s37
    s_and_b32 s37, s18, 1
    s_lshl_b32 s37, s37, 11
    s_add_u32 s36, s36, s37
    s_add_u32 s36, s36, {WS_ATT}
    buffer_store_dwordx4 v[32:35], v{vL16}, s[12:15], s36 offen
    buffer_store_dwordx4 v[36:39], v{vL16}, s[12:15], s36 offen offset:1024
    s_branch {end}
    ''')
    for lab, L in rare:
        k.label(lab)
        k('s_nop 12')
        for l in L:
            k(l)
        k('s_nop 4')
        k(f's_branch {lab}_ret')
    k.label(end)
    return k, 256, 256, 128 * 1024 + 8192
```

```python
from asmgen import *
from gen import *


def gemm_tile(c, st, idx, acc, swap=False, filler=()):
    k = c.k
    main = []
    for kb in range(16):
        sub = K('tmp')
        st.k = sub
        st.vm.k = sub
        a = st.get(idx)
        cc = '0' if kb == 0 else vr(acc, 16)
        xb = vr(c.vXN + 4 * kb, 4)
        if not swap:
            sub(f'v_mfma_f32_32x32x16_bf16 {vr(acc, 16)}, {a}, {xb}, {cc}')
        else:
            sub(f'v_mfma_f32_32x32x16_bf16 {vr(acc, 16)}, {xb}, {a}, {cc}')
        st.refill(idx)
        idx += 1
        main.append('\n'.join(sub.lines))
    st.k = k
    st.vm.k = k
    interleave(k, main, list(filler))
    return idx


def residual(c, acc, half):
    k = c.k
    for l in round_pairs(k, [acc + i for i in range(16)], c.vT):
        k(l)
    unpack16(k, c.vXP, c.vF)
    for i in range(16):
        if half:
            k(f'v_fmac_f32 v{c.vF + i}, 0.5, v{acc + i}')
        else:
            k(f'v_add_f32 v{c.vF + i}, v{c.vF + i}, v{acc + i}')
    for i in range(8):
        k(f'v_cvt_pk_bf16_f32 v{c.vXP + i}, v{c.vF + 2 * i}, v{c.vF + 2 * i + 1}')
    unpack16(k, c.vXP, c.vF)


def gen_k3(stamps=False):
    k = K('oproj_kernel')
    c = RowCtx(k)
    c.stamps = stamps
    vm, lg = c.vm, c.lg
    end = 'L_k3_end'
    c.prologue(250, end)
    k(f'''
    s_lshl_b32 s18, s2, 14
    s_add_u32 s19, s18, {WS_ATT}
    s_lshl_b32 s21, s16, 11
    s_add_u32 s20, s18, s21
    s_add_u32 s22, s20, {WS_X2}
    s_add_u32 s23, s20, {WS_G}
    s_add_u32 s20, s20, {WS_X1}
    s_mul_i32 s17, s16, {48 * KB}
    s_add_u32 s17, s17, {WP_K3 * KB}
    s_waitcnt lgkmcnt(0)
    ''')
    srd(k, 12, 6, WS_SIZE)
    toks = []
    for kb in range(16):
        k(f'buffer_load_dwordx4 {vr(c.vXN + 4 * kb, 4)}, v{c.vL16}, s[12:15], s19 offen offset:{(kb % 4) * 1024}')
        toks.append(vm.issue())
        if kb % 4 == 3:
            k('s_add_u32 s19, s19, 4096')
    k(f'buffer_load_dwordx4 {vr(c.vXP, 4)}, v{c.vL16}, s[12:15], s20 offen')
    vm.issue()
    k(f'buffer_load_dwordx4 {vr(c.vXP + 4, 4)}, v{c.vL16}, s[12:15], s20 offen offset:1024')
    tx = vm.issue()
    k('s_barrier')
    st = Stream(k, vm, c.vRing, c.depth, 48, 17, c.vL16, 12)
    st.prime()
    vm.wait(tx)
    c.stamp()
    idx = gemm_tile(c, st, 0, c.vAcc)
    c.stamp()
    residual(c, c.vAcc, False)
    k(f'''
    buffer_store_dwordx4 {vr(c.vXP, 4)}, v{c.vL16}, s[12:15], s22 offen
    buffer_store_dwordx4 {vr(c.vXP + 4, 4)}, v{c.vL16}, s[12:15], s22 offen offset:1024
    ''')
    vm.issue()
    vm.issue()
    c.layernorm()
    A, B = c.vAcc, c.vAcc + 16
    idx = gemm_tile(c, st, idx, A)
    idx = gemm_tile(c, st, idx, B)
    c.stamp()
    T = c.vT
    for l in round_pairs(k, [A + i for i in range(16)], T):
        k(l)
    for l in round_pairs(k, [B + i for i in range(16)], T):
        k(l)
    for i in range(16):
        k(f'v_mul_f32 v{B + i}, 0x{f2u(-LOG2E):08x}, v{B + i}')
    for i in range(16):
        k(f'v_exp_f32 v{B + i}, v{B + i}')
    for i in range(16):
        k(f'v_add_f32 v{B + i}, 1.0, v{B + i}')
    for i in range(16):
        k(f'v_rcp_f32 v{B + i}, v{B + i}')
    for l in round_pairs(k, [B + i for i in range(16)], T):
        k(l)
    for i in range(16):
        k(f'v_mul_f32 v{A + i}, v{A + i}, v{B + i}')
    for i in range(8):
        k(f'v_cvt_pk_bf16_f32 v{c.vS + i}, v{A + 2 * i}, v{A + 2 * i + 1}')
    k(f'''
    buffer_store_dwordx4 {vr(c.vS, 4)}, v{c.vL16}, s[12:15], s23 offen
    buffer_store_dwordx4 {vr(c.vS + 4, 4)}, v{c.vL16}, s[12:15], s23 offen offset:1024
    ''')
    c.stamp_out()
    k.label(end)
    return k, 256, 250, RowCtx.LDS_TOTAL


def gen_k4(stamps=False):
    k = K('convff2_kernel')
    c = RowCtx(k)
    c.stamps = stamps
    vm, lg = c.vm, c.lg
    end = 'L_k4_end'
    c.prologue(250, end)
    k('s_load_dwordx2 s[4:5], s[0:1], 48')
    k('s_load_dwordx2 s[24:25], s[0:1], 80')
    k(f'''
    s_lshl_b32 s18, s2, 14
    s_lshl_b32 s21, s16, 11
    s_add_u32 s20, s18, s21
    s_add_u32 s20, s20, {WS_X2}
    s_add_u32 s23, s21, {WS_G}
    s_mul_i32 s17, s16, {144 * KB}
    s_add_u32 s17, s17, {WP_K4 * KB}
    s_cmp_ge_u32 s2, 125
    s_cselect_b32 s26, 4000, 0
    s_lshl_b32 s27, s2, 5
    s_sub_u32 s28, s27, s26
    s_lshl_b32 s29, s16, 6            ; w*64 bytes
    v_lshlrev_b32 v10, 3, v9          ; h*8
    v_lshlrev_b32 v11, 9, v8
    v_add_u32 v11, v11, v10
    s_waitcnt lgkmcnt(0)
    ''')
    srd(k, 8, 4, 2560)
    srd(k, 12, 6, WS_SIZE)
    GA = c.vXN
    DW = c.vXN + 40
    gt = []
    for i in range(5):
        k(f'''
        v_add_u32 v12, s28, v8
        v_add_u32 v12, {i - 2}, v12
        v_add_u32 v13, s27, v8
        v_add_u32 v13, {i - 2}, v13
        v_lshrrev_b32 v14, 5, v13
        v_lshlrev_b32 v14, 14, v14
        v_and_b32 v13, 31, v13
        v_lshl_add_u32 v13, v9, 5, v13
        v_lshl_add_u32 v14, v13, 4, v14
        v_mov_b32 v13, 0x80000000
        v_cmp_gt_u32 vcc, 4000, v12
        v_cndmask_b32 v14, v13, v14, vcc
        buffer_load_dwordx4 {vr(GA + 8 * i, 4)}, v14, s[12:15], s23 offen
        buffer_load_dwordx4 {vr(GA + 8 * i + 4, 4)}, v14, s[12:15], s23 offen offset:1024
        ''')
        vm.issue()
        gt.append(vm.issue())
    for i in range(5):
        for q in range(4):
            k(f'buffer_load_dwordx2 {vr(DW + 8 * i + 2 * q, 2)}, v10, s[8:11], s29 offen offset:{512 * i + 16 * q}')
            td = vm.issue()
    k(f'buffer_load_dwordx4 {vr(c.vXP, 4)}, v{c.vL16}, s[12:15], s20 offen')
    vm.issue()
    k(f'buffer_load_dwordx4 {vr(c.vXP + 4, 4)}, v{c.vL16}, s[12:15], s20 offen offset:1024')
    tx = vm.issue()
    k('s_barrier')
    st = Stream(k, vm, c.vRing, c.depth, 144, 17, c.vL16, 12)
    st.prime()
    c.vHW = 0
    k(f'''
    s_lshl_b32 s19, s16, 13
    v_add_u32 v12, s19, v{c.vL16}
    v_add_u32 v0, {c.LDS_H}, v12
    v_mov_b32 v{c.vXP + 8 + 16 + 32 - 1}, v11
    ''')
    vRowOff = c.vS + 31
    vm.wait(tx)
    c.stamp()
    F, S, T = c.vF, c.vS, c.vT
    for i in range(5):
        unpack16(k, GA + 8 * i, S)
        unpack16(k, DW + 8 * i, S + 16)
        dst = F if i == 0 else S
        for e in range(16):
            k(f'v_mul_f32 v{dst + e}, v{S + e}, v{S + 16 + e}')
        for l in round_pairs(k, [dst + e for e in range(16)], T):
            k(l)
        if i > 0:
            for e in range(16):
                k(f'v_add_f32 v{F + e}, v{F + e}, v{S + e}')
            for l in round_pairs(k, [F + e for e in range(16)], T):
                k(l)
    for l in silu_pack(F, S + 16, T):
        k(l)
    k(f'ds_write_b128 v{c.vXnW}, {vr(S + 16, 4)}')
    k(f'ds_write_b128 v{c.vXnW}, {vr(S + 20, 4)} offset:1024')
    k('s_waitcnt lgkmcnt(0)')
    c.stamp()
    k('s_barrier')
    for kb in range(16):
        k(f'ds_read_b128 {vr(c.vXN + 4 * kb, 4)}, v{c.vXnR} offset:{1024 * kb}')
    k('s_waitcnt lgkmcnt(0)')
    c.stamp()
    idx = gemm_tile(c, st, 0, c.vAcc)
    c.stamp()
    residual(c, c.vAcc, False)
    k('s_barrier')
    c.layernorm()
    idx = ff_block(c, st, idx)
    residual(c, c.vAcc, True)
    p = c.layernorm(last=True)
    k(f'''
    v_and_b32 v8, 31, v{c.vL16}
    v_lshrrev_b32 v8, 4, v{c.vL16}
    v_and_b32 v9, 31, v8
    v_lshrrev_b32 v8, 5, v8
    v_lshlrev_b32 v9, 9, v9
    v_lshl_add_u32 v11, v8, 3, v9
    s_lshl_b32 s18, s2, 14
    s_add_u32 s18, s18, s29
    ''')
    srd(k, 8, 24, 4096000)
    for q in range(4):
        k(f'buffer_store_dwordx2 {vr(p + 2 * q, 2)}, v11, s[8:11], s18 offen offset:{16 * q}')
    c.stamp_out()
    k.label(end)
    return k, 256, 250, RowCtx.LDS_TOTAL
```

```python
import sys
import struct
from asmgen import *

KB = 1024
MB = 1024 * 1024
WS_WP = 0
WS_X1 = 4 * MB
WS_Q = 8 * MB
WS_KV = 16 * MB
WS_ATT = 24 * MB
WS_X2 = 28 * MB
WS_G = 32 * MB
WS_XN = 36 * MB
WS_SIZE = 40 * MB

WP_K1 = 0
WP_K3 = 1408
WP_K4 = 1792

LOG2E = 1.4426950408889634


def f2u(f):
    return struct.unpack('<I', struct.pack('<f', f))[0]


class Cnt:
    def __init__(self, k, name, maxv):
        self.k, self.name, self.maxv = k, name, maxv
        self.issued = 0
        self.done = 0

    def issue(self):
        self.issued += 1
        return self.issued - 1

    def wait(self, tok):
        if tok < self.done:
            return
        n = self.issued - 1 - tok
        n = min(n, self.maxv)
        self.k(f's_waitcnt {self.name}({n})')
        self.done = self.issued - n

    def wait_all(self):
        if self.done < self.issued:
            self.k(f's_waitcnt {self.name}(0)')
            self.done = self.issued


def srd(k, s, ptr, size):
    k(f'''
    s_mov_b32 s{s}, s{ptr}
    s_and_b32 s{s + 1}, s{ptr + 1}, 0xffff
    s_mov_b32 s{s + 2}, {size}
    s_mov_b32 s{s + 3}, 0x20000
    ''')


def gen_k0():
    k = K('pack_kernel')
    mats = [
        ('ff1a', 8, 1024, 256, WP_K1, 176, (2, 7), (0, 3), 0),
        ('ff1b', 16, 256, 1024, WP_K1, 176, (0, 7), (0, 0), 64),
        ('qkv', 24, 768, 256, WP_K1, 176, (0, 7), (3, 3), 128),
        ('wo', 32, 256, 256, WP_K3, 48, (0, 7), (0, 0), 0),
        ('pw1', 40, 512, 256, WP_K3, 48, (0, 7), (3, 1), 16),
        ('pw2', 56, 256, 256, WP_K4, 144, (0, 7), (0, 0), 0),
        ('ff2a', 64, 1024, 256, WP_K4, 144, (2, 7), (0, 3), 16),
        ('ff2b', 72, 256, 1024, WP_K4, 144, (0, 7), (0, 0), 80),
    ]
    NPACK = 368
    NZERO = 24
    NLN = 250
    k(f'''
    s_cmp_ge_u32 s2, {NPACK + NZERO + NLN}
    s_cbranch_scc1 L_pack_end
    s_cmp_lt_u32 s2, {NLN}
    s_cbranch_scc1 L_pack_ln
    s_sub_u32 s2, s2, {NLN}
    s_load_dwordx2 s[6:7], s[0:1], 96
    v_and_b32 v1, 63, v0
    v_lshrrev_b32 v2, 6, v0
    v_and_b32 v3, 31, v0
    v_bfe_u32 v4, v0, 5, 1
    v_readfirstlane_b32 s16, v2
    s_cmp_ge_u32 s2, {NPACK}
    s_cbranch_scc1 L_pack_zero
    ''')
    wg0 = 0
    for i, (nm, arg, N, Kd, base, c1, (s1, m1), (s2_, m2), add) in enumerate(mats):
        nfr = (N // 32) * (Kd // 16)
        nwg = nfr // 8
        lk = 4 if Kd == 256 else 6
        k(f'''
        s_cmp_ge_u32 s2, {wg0 + nwg}
        s_cbranch_scc1 L_pack_next{i}
        s_load_dwordx2 s[4:5], s[0:1], {arg}
        s_sub_u32 s17, s2, {wg0}
        s_lshl_b32 s17, s17, 3
        s_add_u32 s17, s17, s16
        s_lshr_b32 s18, s17, {lk}        ; mt
        s_and_b32 s19, s17, {(1 << lk) - 1}   ; kb
        s_mov_b32 s20, {N * 2}
        s_mov_b32 s21, {N * Kd * 2}      ; size
        s_lshr_b32 s22, s18, {s1}
        s_and_b32 s22, s22, {m1}
        s_mul_i32 s22, s22, {c1}
        s_lshr_b32 s23, s18, {s2_}
        s_and_b32 s23, s23, {m2}
        s_lshl_b32 s23, s23, 4
        s_add_u32 s22, s22, s23
        s_add_u32 s22, s22, s19
        s_add_u32 s22, s22, {base + add}
        s_branch L_pack_common
        ''')
        k.label(f'L_pack_next{i}')
        wg0 += nwg
    assert wg0 == NPACK
    k('s_branch L_pack_end')
    k.label('L_pack_common')
    k('s_waitcnt lgkmcnt(0)')
    k('''
    s_mov_b32 s8, s4
    s_and_b32 s9, s5, 0xffff
    s_mov_b32 s10, s21
    s_mov_b32 s11, 0x20000
    ''')
    srd(k, 12, 6, WS_SIZE)
    k('''
    s_lshl_b32 s24, s19, 4
    v_lshlrev_b32 v5, 2, v4
    v_add_u32 v5, s24, v5
    v_mul_lo_u32 v5, v5, s20
    s_lshl_b32 s25, s18, 5
    v_add_u32 v6, s25, v3
    v_lshlrev_b32 v6, 1, v6
    v_add_u32 v5, v5, v6
    ''')
    rows = [0, 1, 2, 3, 8, 9, 10, 11]
    for j, r in enumerate(rows):
        k(f's_mul_i32 s{30 + j}, s20, {r}')
    for j in range(8):
        k(f'buffer_load_ushort v{16 + j}, v5, s[8:11], s{30 + j} offen')
    k('''
    s_lshl_b32 s22, s22, 10
    v_lshlrev_b32 v7, 4, v1
    s_waitcnt vmcnt(0)
    v_lshl_or_b32 v8, v17, 16, v16
    v_lshl_or_b32 v9, v19, 16, v18
    v_lshl_or_b32 v10, v21, 16, v20
    v_lshl_or_b32 v11, v23, 16, v22
    buffer_store_dwordx4 v[8:11], v7, s[12:15], s22 offen
    s_branch L_pack_end
    ''')
    k.label('L_pack_zero')
    k('s_waitcnt lgkmcnt(0)')
    srd(k, 12, 6, WS_SIZE)
    k(f'''
    s_sub_u32 s17, s2, {NPACK}
    s_mul_i32 s18, s17, 43
    s_lshr_b32 s18, s18, 7            ; bh = z/3   (z<24)
    s_mul_i32 s19, s18, 3
    s_sub_u32 s19, s17, s19           ; z%3
    s_add_u32 s19, s19, 125
    s_lshl_b32 s18, s18, 20
    s_lshl_b32 s19, s19, 13
    s_add_u32 s18, s18, s19
    s_add_u32 s18, s18, {WS_KV}
    v_lshlrev_b32 v7, 4, v0
    v_mov_b32 v8, 0
    v_mov_b32 v9, 0
    v_mov_b32 v10, 0
    v_mov_b32 v11, 0
    buffer_store_dwordx4 v[8:11], v7, s[12:15], s18 offen
    s_branch L_pack_end
    ''')
    k.label('L_pack_ln')
    c = RowCtx(k)
    c.LDS_STAT = 0
    c.LDS_XN = 0
    c.prologue(250, 'L_pack_end')
    k('s_load_dwordx2 s[4:5], s[0:1], 0')
    k(f'''
    v_lshlrev_b32 v11, 9, v8
    v_lshlrev_b32 v12, 3, v9
    v_add_u32 v11, v11, v12
    s_lshl_b32 s18, s2, 14
    s_lshl_b32 s19, s16, 6
    s_add_u32 s19, s18, s19
    s_lshl_b32 s21, s16, 11
    s_add_u32 s20, s18, s21
    s_add_u32 s20, s20, {WS_XN}
    s_waitcnt lgkmcnt(0)
    ''')
    srd(k, 8, 4, 4096000)
    srd(k, 12, 6, WS_SIZE)
    for i in range(4):
        k(f'buffer_load_dwordx2 {vr(c.vXP + 2 * i, 2)}, v11, s[8:11], s19 offen offset:{16 * i}')
    k('s_waitcnt vmcnt(0)')
    unpack16(k, c.vXP, c.vF)
    p = c.layernorm(last=True)
    k(f'''
    buffer_store_dwordx4 {vr(p, 4)}, v{c.vL16}, s[12:15], s20 offen
    buffer_store_dwordx4 {vr(p + 4, 4)}, v{c.vL16}, s[12:15], s20 offen offset:1024
    ''')
    k.label('L_pack_end')
    return k, 72, NPACK + NZERO + NLN


class Stream:
    def __init__(self, k, vm, ring, depth, total, sreg, vlane16, srdw):
        self.k, self.vm, self.ring, self.depth, self.total = k, vm, ring, depth, total
        self.sreg, self.vl, self.srdw = sreg, vlane16, srdw
        self.tok = {}
        self.next = 0

    def issue_one(self):
        i = self.next
        if i >= self.total:
            return
        slot = i % self.depth
        self.k(f'buffer_load_dwordx4 {vr(self.ring + 4 * slot, 4)}, v{self.vl}, {sr(self.srdw, 4)}, s{self.sreg} '
               f'offen offset:{(i % 4) * 1024}')
        self.tok[i] = self.vm.issue()
        if i % 4 == 3:
            self.k(f's_add_u32 s{self.sreg}, s{self.sreg}, 4096')
        self.next += 1

    def prime(self):
        while self.next < min(self.depth, self.total):
            self.issue_one()

    def get(self, i):
        self.vm.wait(self.tok[i])
        return vr(self.ring + 4 * (i % self.depth), 4)

    def refill(self, i):
        assert self.next <= i + self.depth
        while self.next <= i + self.depth and self.next < self.total:
            self.issue_one()


def unpack16(k, src, dst):
    for i in range(8):
        k(f'v_lshlrev_b32 v{dst + 2 * i}, 16, v{src + i}')
        k(f'v_and_b32 v{dst + 2 * i + 1}, 0xffff0000, v{src + i}')


def round_pairs(k, regs, tmp):
    out = []
    for i in range(0, len(regs), 2):
        a, b = regs[i], regs[i + 1]
        out.append(f'v_cvt_pk_bf16_f32 v{tmp}, v{a}, v{b}')
        out.append(f'v_lshlrev_b32 v{a}, 16, v{tmp}')
        out.append(f'v_and_b32 v{b}, 0xffff0000, v{tmp}')
    return out


class RowCtx:
    LDS_H = 0
    LDS_XN = 65536
    LDS_STAT = 65536 + 16384
    LDS_TOTAL = 5120 + 16384 + 65536

    def __init__(self, k):
        self.k = k
        self.vm = Cnt(k, 'vmcnt', 63)
        self.lg = Cnt(k, 'lgkmcnt', 15)
        self.vL16 = 1
        self.vStW = 2
        self.vStR = 3
        self.vXnW = 4
        self.vXnR = 5
        self.vT = 6
        self.vXP = 16
        self.vF = 24
        self.vS = 40
        self.vXN = 72
        self.vAcc = 136
        self.vRing = 168
        self.depth = 22

    stamps = False
    nstamp = 0

    def stamp(self):
        if not self.stamps:
            return
        self.k(f's_memtime s[{60 + 2 * self.nstamp}:{61 + 2 * self.nstamp}]')
        self.nstamp += 1

    def stamp_out(self):
        if not self.stamps:
            return
        k = self.k
        self.stamp()
        k('s_waitcnt lgkmcnt(0)')
        k('''
        s_mov_b32 s52, s38
        s_and_b32 s53, s39, 0xffff
        s_mov_b32 s54, 256
        s_mov_b32 s55, 0x20000
        v_mov_b32 v44, 0
        s_cmp_lg_u32 s2, 7
        s_cbranch_scc1 L_nostamp_''' + k.name)
        k('s_cmp_gt_u32 s16, 1')
        k('s_cbranch_scc1 L_nostamp_' + k.name)
        k('s_lshl_b32 s56, s16, 7')
        for i in range(1, self.nstamp):
            k(f's_sub_u32 s{60 + 2 * i}, s{60 + 2 * i}, s60')
            k(f'v_mov_b32 v40, s{60 + 2 * i}')
            k(f'buffer_store_dword v40, v44, s[52:55], s56 offen offset:{4 * i}')
        k.label('L_nostamp_' + k.name)

    def prologue(self, ntiles, end):
        k = self.k
        k(f'''
        s_cmp_ge_u32 s2, {ntiles}
        s_cbranch_scc1 {end}
        s_load_dwordx2 s[38:39], s[0:1], 88
        s_load_dwordx2 s[6:7], s[0:1], 96''')
        self.stamp()
        k(f'''
        v_lshrrev_b32 v6, 6, v0
        v_and_b32 v7, 63, v0
        v_readfirstlane_b32 s16, v6
        v_lshlrev_b32 v{self.vL16}, 4, v7
        v_and_b32 v8, 31, v0
        v_bfe_u32 v9, v0, 5, 1
        v_mul_u32_u24 v{self.vStR}, 80, v8
        v_lshlrev_b32 v10, 1, v6
        v_add_u32 v10, v10, v9
        v_lshlrev_b32 v10, 2, v10
        v_add_u32 v{self.vStR}, {self.LDS_STAT}, v{self.vStR}
        v_add_u32 v{self.vStW}, v10, v{self.vStR}
        v_add_u32 v{self.vXnR}, {self.LDS_XN}, v{self.vL16}
        v_lshlrev_b32 v10, 11, v6
        v_add_u32 v{self.vXnW}, v10, v{self.vL16}
        v_add_u32 v{self.vXnW}, {self.LDS_XN}, v{self.vXnW}
        ''')

    def layernorm(self, last=False):
        k, lg = self.k, self.lg
        F, S, T = self.vF, self.vS, self.vT

        def pk(op, d, a, b, c=None, mods=''):
            s_ = f'v_pk_{op}_f32 {vr(d, 2)}, {vr(a, 2)}, {vr(b, 2)}'
            if c is not None:
                s_ += f', {vr(c, 2)}'
            k(s_ + mods)
        NEGB = ' op_sel_hi:[1,0] neg_lo:[0,1] neg_hi:[0,1]'
        BC = ' op_sel_hi:[1,0]'

        def sum16(X, t):
            for i in range(4):
                pk('add', t + 2 * i, X + 4 * i, X + 4 * i + 2)
            pk('add', t, t, t + 2)
            pk('add', t + 4, t + 4, t + 6)
            pk('add', t, t, t + 4)
            k(f'v_add_f32 v{t}, v{t}, v{t + 1}')

        def dev2(X, m, t):
            for i in range(8):
                d = t + 2 + 2 * (i & 1)
                pk('add', d, X + 2 * i, m, mods=NEGB)
                if i == 0:
                    pk('mul', t, d, d)
                else:
                    pk('fma', t, d, d, t)
            k(f'v_add_f32 v{t}, v{t}, v{t + 1}')
        sum16(F, T)
        k(f'v_mul_f32 v{T}, 0x3d800000, v{T}')
        dev2(F, T, T + 2)
        k(f'ds_write_b32 v{self.vStW}, v{T}')
        lg.issue()
        k(f'ds_write_b32 v{self.vStW}, v{T + 2} offset:2560')
        lg.issue()
        lg.wait_all()
        self.stamp()
        k('s_barrier')
        self.stamp()
        for q in range(4):
            k(f'ds_read_b128 {vr(S + 4 * q, 4)}, v{self.vStR} offset:{16 * q}')
            lg.issue()
        for q in range(4):
            k(f'ds_read_b128 {vr(S + 16 + 4 * q, 4)}, v{self.vStR} offset:{2560 + 16 * q}')
            t_ = lg.issue()
        lg.wait(t_ - 4)
        self.stamp()
        sum16(S, T)
        k(f'v_mul_f32 v{T}, 0x3d800000, v{T}')
        dev2(S, T, T + 2)
        lg.wait_all()
        sum16(S + 16, S)
        k(f'v_fmac_f32 v{S}, 0x41800000, v{T + 2}')
        k(f'v_mul_f32 v{T + 2}, 0x3b800000, v{S}')
        k(f'v_cvt_pk_bf16_f32 v{T + 4}, v{T}, v{T + 2}')
        k(f'v_lshlrev_b32 v{T}, 16, v{T + 4}')
        k(f'v_and_b32 v{T + 2}, 0xffff0000, v{T + 4}')
        k(f'v_add_f32 v{T + 2}, 0x3727c5ac, v{T + 2}')
        k(f'v_cvt_pk_bf16_f32 v{T + 4}, v{T + 2}, v{T + 2}')
        k(f'v_lshlrev_b32 v{T + 2}, 16, v{T + 4}')
        k(f'v_sqrt_f32 v{T + 2}, v{T + 2}')
        for i in range(8):
            pk('add', S + 2 * i, F + 2 * i, T, mods=NEGB)
        k(f'v_cvt_pk_bf16_f32 v{T + 4}, v{T + 2}, v{T + 2}')
        k(f'v_lshlrev_b32 v{T + 2}, 16, v{T + 4}')
        k(f'v_rcp_f32 v{T + 2}, v{T + 2}')
        for l in round_pairs(k, [S + i for i in range(16)], T + 4):
            k(l)
        for i in range(8):
            pk('mul', S + 2 * i, S + 2 * i, T + 2, mods=BC)
        for i in range(8):
            k(f'v_cvt_pk_bf16_f32 v{S + 16 + i}, v{S + 2 * i}, v{S + 2 * i + 1}')
        if last:
            return S + 16
        k(f'ds_write_b128 v{self.vXnW}, {vr(S + 16, 4)}')
        lg.issue()
        k(f'ds_write_b128 v{self.vXnW}, {vr(S + 20, 4)} offset:1024')
        lg.issue()
        lg.wait_all()
        self.stamp()
        k('s_barrier')
        self.stamp()
        for kb in range(16):
            k(f'ds_read_b128 {vr(self.vXN + 4 * kb, 4)}, v{self.vXnR} offset:{1024 * kb}')
            lg.issue()
        lg.wait_all()


def interleave(k, main, filler, per=None):
    n = len(main)
    f = list(filler)
    per = per or -(-len(f) // max(n, 1))
    for g in main:
        k(g)
        for _ in range(per):
            if f:
                k(f.pop(0))
    for x in f:
        k(x)


def silu_pack(acc, dst, t0):
    L = []
    for i in range(0, 16, 2):
        a, b = acc + i, acc + i + 1
        ta, tb = t0 + 1 + (i & 2), t0 + 2 + (i & 2)
        L += [f'v_cvt_pk_bf16_f32 v{t0}, v{a}, v{b}',
              f'v_lshlrev_b32 v{a}, 16, v{t0}',
              f'v_and_b32 v{b}, 0xffff0000, v{t0}',
              f'v_mul_f32 v{ta}, 0x{f2u(-LOG2E):08x}, v{a}',
              f'v_mul_f32 v{tb}, 0x{f2u(-LOG2E):08x}, v{b}',
              f'v_exp_f32 v{ta}, v{ta}',
              f'v_exp_f32 v{tb}, v{tb}',
              f'v_add_f32 v{ta}, 1.0, v{ta}',
              f'v_add_f32 v{tb}, 1.0, v{tb}',
              f'v_rcp_f32 v{ta}, v{ta}',
              f'v_rcp_f32 v{tb}, v{tb}',
              f'v_mul_f32 v{a}, v{a}, v{ta}',
              f'v_mul_f32 v{b}, v{b}, v{tb}',
              f'v_cvt_pk_bf16_f32 v{dst + i // 2}, v{a}, v{b}']
    return L


def ff_block(c, st, widx0):
    k, lg = c.k, c.lg
    idx = widx0
    pend = []
    HP = c.vS
    for mt in range(4):
        acc = c.vAcc + 16 * (mt & 1)
        main = []
        for kb in range(16):
            sub = K('tmp')
            st.k = sub
            st.vm.k = sub
            a = st.get(idx)
            cc = '0' if kb == 0 else vr(acc, 16)
            sub(f'v_mfma_f32_32x32x16_bf16 {vr(acc, 16)}, {a}, {vr(c.vXN + 4 * kb, 4)}, {cc}')
            st.refill(idx)
            idx += 1
            main.append('\n'.join(sub.lines))
        st.k = k
        st.vm.k = k
        interleave(k, main, pend)
        hp = HP + 16 * (mt & 1)
        pend = silu_pack(acc, hp, c.vT + 5 * (mt & 1))
        pend.append(f'ds_write_b128 v{c.vHW}, {vr(hp, 4)} offset:{2048 * mt}')
        pend.append(f'ds_write_b128 v{c.vHW}, {vr(hp + 4, 4)} offset:{2048 * mt + 1024}')
    for x in pend:
        k(x)
    c.stamp()
    k('s_waitcnt lgkmcnt(0)')
    lg.done = lg.issued
    k('s_barrier')
    c.stamp()
    NB = 8
    toks = {}

    def rd(kb):
        k(f'ds_read_b128 {vr(c.vXN + 4 * (kb % NB), 4)}, v{c.vL16} offset:{c.LDS_H + 1024 * kb}')
        toks[kb] = lg.issue()
    for kb in range(NB):
        rd(kb)
    acc = c.vAcc
    for kb in range(64):
        a = st.get(idx)
        lg.wait(toks[kb])
        cc = '0' if kb == 0 else vr(acc, 16)
        k(f'v_mfma_f32_32x32x16_bf16 {vr(acc, 16)}, {a}, {vr(c.vXN + 4 * (kb % NB), 4)}, {cc}')
        st.refill(idx)
        idx += 1
        if kb + NB < 64:
            rd(kb + NB)
    return idx


def gen_k1(stamps=False):
    k = K('ff1qkv_kernel')
    c = RowCtx(k)
    c.stamps = stamps
    vm, lg = c.vm, c.lg
    end = 'L_k1_end'
    c.prologue(250, end)
    c.vHW = 0
    k('s_load_dwordx2 s[4:5], s[0:1], 0')
    k(f'''
    v_lshlrev_b32 v11, 9, v8
    v_lshlrev_b32 v12, 3, v9
    v_add_u32 v11, v11, v12
    s_lshl_b32 s18, s2, 14
    s_lshl_b32 s19, s16, 6
    s_add_u32 s18, s18, s19
    s_mul_i32 s17, s16, {176 * KB}
    s_waitcnt lgkmcnt(0)
    ''')
    srd(k, 8, 4, 4096000)
    srd(k, 12, 6, WS_SIZE)
    k(f'''
    s_lshl_b32 s20, s2, 14
    s_lshl_b32 s21, s16, 11
    s_add_u32 s20, s20, s21
    s_add_u32 s20, s20, {WS_XN}
    s_add_u32 s21, s21, {c.LDS_XN}
    s_mov_b32 m0, s21
    buffer_load_dwordx4 v{c.vL16}, s[12:15], s20 offen lds
    buffer_load_dwordx4 v{c.vL16}, s[12:15], s20 offen offset:1024 lds
    ''')
    vm.issue()
    td = vm.issue()
    k('s_barrier')
    st = Stream(k, vm, c.vRing, c.depth, 176, 17, c.vL16, 12)
    st.prime()
    xt = []
    for i in range(4):
        k(f'buffer_load_dwordx2 {vr(c.vXP + 2 * i, 2)}, v11, s[8:11], s18 offen offset:{16 * i}')
        xt.append(vm.issue())
    c.vHW = 0
    k(f'''
    s_lshl_b32 s19, s16, 13
    v_add_u32 v12, s19, v{c.vL16}
    v_add_u32 v0, {c.LDS_H}, v12
    ''')
    vm.wait(td)
    c.stamp()
    k('s_barrier')
    for kb in range(16):
        k(f'ds_read_b128 {vr(c.vXN + 4 * kb, 4)}, v{c.vXnR} offset:{1024 * kb}')
    k('s_waitcnt lgkmcnt(0)')
    c.stamp()
    idx = ff_block(c, st, 0)
    c.stamp()
    acc = c.vAcc
    for l in round_pairs(k, [acc + i for i in range(16)], c.vT):
        k(l)
    vm.wait(xt[-1])
    unpack16(k, c.vXP, c.vF)
    for i in range(16):
        k(f'v_fmac_f32 v{c.vF + i}, 0.5, v{acc + i}')
    for i in range(8):
        k(f'v_cvt_pk_bf16_f32 v{c.vXP + i}, v{c.vF + 2 * i}, v{c.vF + 2 * i + 1}')
    unpack16(k, c.vXP, c.vF)
    k(f'''
    s_lshl_b32 s20, s2, 14
    s_lshl_b32 s21, s16, 11
    s_add_u32 s20, s20, s21
    s_add_u32 s20, s20, {WS_X1}
    buffer_store_dwordx4 {vr(c.vXP, 4)}, v{c.vL16}, s[12:15], s20 offen
    buffer_store_dwordx4 {vr(c.vXP + 4, 4)}, v{c.vL16}, s[12:15], s20 offen offset:1024
    ''')
    vm.issue()
    vm.issue()
    c.layernorm()
    c.stamp()
    k(f'''
    s_cmp_ge_u32 s2, 125
    s_cselect_b32 s22, 1, 0
    s_mul_i32 s23, s22, 125
    s_sub_u32 s23, s2, s23
    s_lshl_b32 s22, s22, 2
    s_lshr_b32 s24, s16, 1
    s_add_u32 s22, s22, s24          ; bh
    s_and_b32 s25, s16, 1            ; d half
    s_lshl_b32 s25, s25, 11          ; *2KB
    s_lshl_b32 s26, s22, 19          ; bh*512KB
    s_lshl_b32 s27, s23, 12          ; tile*4KB
    s_add_u32 s26, s26, s27
    s_add_u32 s26, s26, s25
    s_add_u32 s26, s26, {WS_Q}       ; Q dest
    s_lshl_b32 s27, s22, 20          ; bh*1MB
    s_lshl_b32 s28, s23, 13          ; tile*8KB
    s_add_u32 s27, s27, s28
    s_add_u32 s27, s27, s25
    s_add_u32 s27, s27, {WS_KV}      ; K dest
    s_add_u32 s28, s27, 4096         ; V dest
    ''')
    pend = []
    QS = 0.125 * LOG2E
    for t in range(3):
        acc = c.vAcc + 16 * (t & 1)
        main = []
        for kb in range(16):
            sub = K('tmp')
            st.k = sub
            st.vm.k = sub
            a = st.get(idx)
            cc = '0' if kb == 0 else vr(acc, 16)
            xb = vr(c.vXN + 4 * kb, 4)
            if t < 2:
                sub(f'v_mfma_f32_32x32x16_bf16 {vr(acc, 16)}, {a}, {xb}, {cc}')
            else:
                sub(f'v_mfma_f32_32x32x16_bf16 {vr(acc, 16)}, {xb}, {a}, {cc}')
            st.refill(idx)
            idx += 1
            main.append('\n'.join(sub.lines))
        st.k = k
        st.vm.k = k
        interleave(k, main, pend)
        hp = c.vS + 16 * (t & 1)
        pend = []
        if t == 0:
            for i in range(16):
                pend.append(f'v_mul_f32 v{acc + i}, 0x{f2u(QS):08x}, v{acc + i}')
        for i in range(8):
            pend.append(f'v_cvt_pk_bf16_f32 v{hp + i}, v{acc + 2 * i}, v{acc + 2 * i + 1}')
        pend.append(f'buffer_store_dwordx4 {vr(hp, 4)}, v{c.vL16}, s[12:15], s{26 + t} offen')
        pend.append(f'buffer_store_dwordx4 {vr(hp + 4, 4)}, v{c.vL16}, s[12:15], s{26 + t} offen offset:1024')
        if t < 2:
            stores = pend[-2:]
            pend = pend[:-2]
            pend_st = stores
        else:
            pend_st = pend[-2:]
            pend = pend[:-2]
        for x in pend:
            k(x)
        for x in pend_st:
            k(x)
            vm.issue()
        pend = []
    c.stamp_out()
    k.label(end)
    return k, 256, 250, RowCtx.LDS_TOTAL


def build(path):
    hdr = open('standalone__conformer_family_zipformer__speech.s.ref').read().split(
        '; Override')[0]
    ks = []
    k0, vg0, g0 = gen_k0()
    ks.append((k0, vg0, g0, 512, 8192))
    k1, vg1, g1, lds1 = gen_k1()
    ks.append((k1, vg1, g1, 512, lds1))
    from gen_attn import gen_k2
    k2, vg2, g2, lds2 = gen_k2()
    ks.append((k2, vg2, g2, 512, lds2))
    from gen_k34 import gen_k3, gen_k4
    k3, vg3, g3, lds3 = gen_k3()
    ks.append((k3, vg3, g3, 512, lds3))
    k4, vg4, g4, lds4 = gen_k4()
    ks.append((k4, vg4, g4, 512, lds4))
    open(path, 'w').write(module_text(hdr, ks))


if __name__ == '__main__':
    build(sys.argv[1] if len(sys.argv) > 1 else 'k.s')
```

```python
from asmgen import *
from gen import *


def gemm_tile(c, st, idx, acc, swap=False, filler=()):
    k = c.k
    main = []
    for kb in range(16):
        sub = K('tmp')
        st.k = sub
        st.vm.k = sub
        a = st.get(idx)
        cc = '0' if kb == 0 else vr(acc, 16)
        xb = vr(c.vXN + 4 * kb, 4)
        if not swap:
            sub(f'v_mfma_f32_32x32x16_bf16 {vr(acc, 16)}, {a}, {xb}, {cc}')
        else:
            sub(f'v_mfma_f32_32x32x16_bf16 {vr(acc, 16)}, {xb}, {a}, {cc}')
        st.refill(idx)
        idx += 1
        main.append('\n'.join(sub.lines))
    st.k = k
    st.vm.k = k
    interleave(k, main, list(filler))
    return idx


def residual(c, acc, half):
    k = c.k
    for l in round_pairs(k, [acc + i for i in range(16)], c.vT):
        k(l)
    unpack16(k, c.vXP, c.vF)
    if half:
        k(f'v_mov_b32 v{c.vT + 2}, 0.5')
    for i in range(8):
        if half:
            c._pk('fma', c.vF + 2 * i, acc + 2 * i, c.vT + 2, c.vF + 2 * i, mods=' op_sel_hi:[1,0,1]')
        else:
            c._pk('add', c.vF + 2 * i, c.vF + 2 * i, acc + 2 * i)
    for i in range(8):
        k(f'v_cvt_pk_bf16_f32 v{c.vXP + i}, v{c.vF + 2 * i}, v{c.vF + 2 * i + 1}')
    unpack16(k, c.vXP, c.vF)


def gen_k3(stamps=False):
    k = K('oproj_kernel')
    c = RowCtx(k)
    c.stamps = stamps
    vm, lg = c.vm, c.lg
    end = 'L_k3_end'
    c.prologue(250, end)
    k(f'''
    s_lshl_b32 s18, s2, 14
    s_add_u32 s19, s18, {WS_ATT}
    s_lshl_b32 s21, s16, 11
    s_add_u32 s20, s18, s21
    s_add_u32 s22, s20, {WS_X2}
    s_add_u32 s23, s20, {WS_G}
    s_add_u32 s20, s20, {WS_X1}
    s_mul_i32 s17, s16, {48 * KB}
    s_add_u32 s17, s17, {WP_K3 * KB}
    s_waitcnt lgkmcnt(0)
    ''')
    srd(k, 12, 6, WS_SIZE)
    toks = []
    for kb in range(16):
        k(f'buffer_load_dwordx4 {vr(c.vXN + 4 * kb, 4)}, v{c.vL16}, s[12:15], s19 offen offset:{(kb % 4) * 1024}')
        toks.append(vm.issue())
        if kb % 4 == 3:
            k('s_add_u32 s19, s19, 4096')
    k(f'buffer_load_dwordx4 {vr(c.vXP, 4)}, v{c.vL16}, s[12:15], s20 offen')
    vm.issue()
    k(f'buffer_load_dwordx4 {vr(c.vXP + 4, 4)}, v{c.vL16}, s[12:15], s20 offen offset:1024')
    tx = vm.issue()
    k('s_barrier')
    st = Stream(k, vm, c.vRing, c.depth, 48, 17, c.vL16, 12)
    st.prime()
    vm.wait(tx)
    c.stamp()
    idx = gemm_tile(c, st, 0, c.vAcc)
    c.stamp()
    residual(c, c.vAcc, False)
    k(f'''
    buffer_store_dwordx4 {vr(c.vXP, 4)}, v{c.vL16}, s[12:15], s22 offen
    buffer_store_dwordx4 {vr(c.vXP + 4, 4)}, v{c.vL16}, s[12:15], s22 offen offset:1024
    ''')
    vm.issue()
    vm.issue()
    c.layernorm()
    A, B = c.vAcc, c.vAcc + 16
    idx = gemm_tile(c, st, idx, A)
    idx = gemm_tile(c, st, idx, B)
    c.stamp()
    T = c.vT
    for l in round_pairs(k, [A + i for i in range(16)], T):
        k(l)
    for l in round_pairs(k, [B + i for i in range(16)], T):
        k(l)
    for i in range(16):
        k(f'v_mul_f32 v{B + i}, 0x{f2u(-LOG2E):08x}, v{B + i}')
    for i in range(16):
        k(f'v_exp_f32 v{B + i}, v{B + i}')
    for i in range(16):
        k(f'v_add_f32 v{B + i}, 1.0, v{B + i}')
    for i in range(16):
        k(f'v_rcp_f32 v{B + i}, v{B + i}')
    for l in round_pairs(k, [B + i for i in range(16)], T):
        k(l)
    for i in range(16):
        k(f'v_mul_f32 v{A + i}, v{A + i}, v{B + i}')
    for i in range(8):
        k(f'v_cvt_pk_bf16_f32 v{c.vS + i}, v{A + 2 * i}, v{A + 2 * i + 1}')
    k(f'''
    buffer_store_dwordx4 {vr(c.vS, 4)}, v{c.vL16}, s[12:15], s23 offen
    buffer_store_dwordx4 {vr(c.vS + 4, 4)}, v{c.vL16}, s[12:15], s23 offen offset:1024
    ''')
    c.stamp_out()
    k.label(end)
    return k, 256, 250, RowCtx.LDS_TOTAL


def gen_k4(stamps=False):
    k = K('convff2_kernel')
    c = RowCtx(k)
    c.stamps = stamps
    vm, lg = c.vm, c.lg
    end = 'L_k4_end'
    c.prologue(250, end)
    k('s_load_dwordx2 s[4:5], s[0:1], 48')
    k('s_load_dwordx2 s[24:25], s[0:1], 80')
    k(f'''
    s_lshl_b32 s18, s2, 14
    s_lshl_b32 s21, s16, 11
    s_add_u32 s20, s18, s21
    s_add_u32 s20, s20, {WS_X2}
    s_add_u32 s23, s21, {WS_G}
    s_mul_i32 s17, s16, {144 * KB}
    s_add_u32 s17, s17, {WP_K4 * KB}
    s_cmp_ge_u32 s2, 125
    s_cselect_b32 s26, 4000, 0
    s_lshl_b32 s27, s2, 5
    s_sub_u32 s28, s27, s26
    s_lshl_b32 s29, s16, 6            ; w*64 bytes
    v_lshlrev_b32 v10, 3, v9          ; h*8
    v_lshlrev_b32 v11, 9, v8
    v_add_u32 v11, v11, v10
    s_waitcnt lgkmcnt(0)
    ''')
    srd(k, 8, 4, 2560)
    srd(k, 12, 6, WS_SIZE)
    GA = c.vXN
    DW = c.vXN + 40
    gt = []
    for i in range(5):
        k(f'''
        v_add_u32 v12, s28, v8
        v_add_u32 v12, {i - 2}, v12
        v_add_u32 v13, s27, v8
        v_add_u32 v13, {i - 2}, v13
        v_lshrrev_b32 v14, 5, v13
        v_lshlrev_b32 v14, 14, v14
        v_and_b32 v13, 31, v13
        v_lshl_add_u32 v13, v9, 5, v13
        v_lshl_add_u32 v14, v13, 4, v14
        v_mov_b32 v13, 0x80000000
        v_cmp_gt_u32 vcc, 4000, v12
        v_cndmask_b32 v14, v13, v14, vcc
        buffer_load_dwordx4 {vr(GA + 8 * i, 4)}, v14, s[12:15], s23 offen
        buffer_load_dwordx4 {vr(GA + 8 * i + 4, 4)}, v14, s[12:15], s23 offen offset:1024
        ''')
        vm.issue()
        gt.append(vm.issue())
    for i in range(5):
        for q in range(4):
            k(f'buffer_load_dwordx2 {vr(DW + 8 * i + 2 * q, 2)}, v10, s[8:11], s29 offen offset:{512 * i + 16 * q}')
            td = vm.issue()
    k(f'buffer_load_dwordx4 {vr(c.vXP, 4)}, v{c.vL16}, s[12:15], s20 offen')
    vm.issue()
    k(f'buffer_load_dwordx4 {vr(c.vXP + 4, 4)}, v{c.vL16}, s[12:15], s20 offen offset:1024')
    tx = vm.issue()
    k('s_barrier')
    st = Stream(k, vm, c.vRing, c.depth, 144, 17, c.vL16, 12)
    st.prime()
    c.vHW = 0
    k(f'''
    s_lshl_b32 s19, s16, 13
    v_add_u32 v12, s19, v{c.vL16}
    v_add_u32 v0, {c.LDS_H}, v12
    v_mov_b32 v{c.vXP + 8 + 16 + 32 - 1}, v11
    ''')
    vRowOff = c.vS + 31
    vm.wait(tx)
    c.stamp()
    F, S, T = c.vF, c.vS, c.vT
    for i in range(5):
        unpack16(k, GA + 8 * i, S)
        unpack16(k, DW + 8 * i, S + 16)
        dst = F if i == 0 else S
        for e in range(16):
            k(f'v_mul_f32 v{dst + e}, v{S + e}, v{S + 16 + e}')
        for l in round_pairs(k, [dst + e for e in range(16)], T):
            k(l)
        if i > 0:
            for e in range(16):
                k(f'v_add_f32 v{F + e}, v{F + e}, v{S + e}')
            for l in round_pairs(k, [F + e for e in range(16)], T):
                k(l)
    for l in silu_pack(F, S + 16, T):
        k(l)
    k(f'ds_write_b128 v{c.vXnW}, {vr(S + 16, 4)}')
    k(f'ds_write_b128 v{c.vXnW}, {vr(S + 20, 4)} offset:1024')
    k('s_waitcnt lgkmcnt(0)')
    c.stamp()
    k('s_barrier')
    for kb in range(16):
        k(f'ds_read_b128 {vr(c.vXN + 4 * kb, 4)}, v{c.vXnR} offset:{1024 * kb}')
    k('s_waitcnt lgkmcnt(0)')
    c.stamp()
    idx = gemm_tile(c, st, 0, c.vAcc)
    c.stamp()
    residual(c, c.vAcc, False)
    k('s_barrier')
    c.layernorm()
    idx = ff_block(c, st, idx)
    residual(c, c.vAcc, True)
    p = c.layernorm(last=True)
    k(f'''
    v_and_b32 v8, 31, v{c.vL16}
    v_lshrrev_b32 v8, 4, v{c.vL16}
    v_and_b32 v9, 31, v8
    v_lshrrev_b32 v8, 5, v8
    v_lshlrev_b32 v9, 9, v9
    v_lshl_add_u32 v11, v8, 3, v9
    s_lshl_b32 s18, s2, 14
    s_add_u32 s18, s18, s29
    ''')
    srd(k, 8, 24, 4096000)
    for q in range(4):
        k(f'buffer_store_dwordx2 {vr(p + 2 * q, 2)}, v11, s[8:11], s18 offen offset:{16 * q}')
    c.stamp_out()
    k.label(end)
    return k, 256, 250, RowCtx.LDS_TOTAL
```

```python
from asmgen import *
from gen import *
from gen_k34 import gemm_tile, residual


def gen_k34(stamps=False):
    k = K('post_kernel')
    c = RowCtx(k)
    c.stamps = stamps
    c.depth = 21
    c.LDS_STAT = 98304
    LDS_CONV = 98304 + 10240
    LDS_DW = LDS_CONV + 20480
    LDS_TOTAL = LDS_DW + 3072
    XB = 16384
    vm, lg = c.vm, c.lg
    end = 'L_k34_end'
    c.prologue(250, end)
    k('s_load_dwordx2 s[4:5], s[0:1], 48')
    k('s_load_dwordx2 s[24:25], s[0:1], 80')
    vB = 15
    k(f'''
    s_lshl_b32 s18, s2, 14
    s_lshl_b32 s21, s16, 11           ; w*2KB
    s_add_u32 s19, s18, s21
    s_add_u32 s20, s19, {WS_X1}       ; x1 A
    s_add_u32 s19, s19, {WS_ATT}      ; att A
    s_add_u32 s22, s21, {WS_ATT}
    s_add_u32 s23, s21, {WS_X1}       ; x1 B
    s_mul_i32 s17, s16, {192 * KB}
    s_add_u32 s17, s17, {WP_K3 * KB}
    s_cmp_ge_u32 s2, 125
    s_cselect_b32 s26, 4000, 0
    s_lshl_b32 s27, s2, 5
    s_sub_u32 s28, s27, s26
    s_lshl_b32 s29, s16, 6            ; w*64 bytes
    v_subrev_u32 v12, 16, v8          ; n-16
    v_add_u32 v13, 16, v8             ; n+16
    v_cmp_gt_u32 vcc, 16, v8
    v_cndmask_b32 v12, v13, v12, vcc  ; delta
    v_add_u32 v13, s28, v12
    v_add_u32 v12, s27, v12
    v_lshrrev_b32 v14, 5, v12
    v_lshlrev_b32 v14, 14, v14
    v_and_b32 v12, 31, v12
    v_lshl_add_u32 v12, v9, 5, v12
    v_lshl_add_u32 v14, v12, 4, v14
    v_mov_b32 v12, 0x80000000
    v_cmp_gt_u32 vcc, 4000, v13
    v_cndmask_b32 v{vB}, v12, v14, vcc
    s_add_u32 s30, s21, {c.LDS_XN}
    s_waitcnt lgkmcnt(0)
    ''')
    srd(k, 8, 4, 2560)
    srd(k, 12, 6, WS_SIZE)
    k(f'''
    s_mov_b32 m0, s30
    buffer_load_dwordx4 v{c.vL16}, s[12:15], s19 offen lds
    buffer_load_dwordx4 v{c.vL16}, s[12:15], s19 offen offset:1024 lds
    s_add_u32 s30, s30, {XB}
    s_mov_b32 m0, s30
    buffer_load_dwordx4 v{vB}, s[12:15], s22 offen lds
    buffer_load_dwordx4 v{vB}, s[12:15], s22 offen offset:1024 lds
    ''')
    for _ in range(4):
        td = vm.issue()
    XPB = c.vS + 24
    k(f'buffer_load_dwordx4 {vr(c.vXP, 4)}, v{c.vL16}, s[12:15], s20 offen')
    k(f'buffer_load_dwordx4 {vr(c.vXP + 4, 4)}, v{c.vL16}, s[12:15], s20 offen offset:1024')
    k(f'buffer_load_dwordx4 {vr(XPB, 4)}, v{vB}, s[12:15], s23 offen')
    k(f'buffer_load_dwordx4 {vr(XPB + 4, 4)}, v{vB}, s[12:15], s23 offen offset:1024')
    for _ in range(4):
        tx = vm.issue()
    k(f's_mov_b32 s30, {LDS_DW}')
    k('s_mov_b32 m0, s30')
    for j in range(3):
        k(f'buffer_load_dwordx4 v{c.vL16}, s[8:11], 0 offen offset:{1024 * j} lds')
        tdw = vm.issue()
    k('s_barrier')
    st = Stream(k, vm, c.vRing, c.depth, 192, 17, c.vL16, 12)
    st.prime()
    c.vHW = 0
    vCW_A, vCW_B, vCR, vDWR = 252, 253, 254, 255
    k(f'''
    s_lshl_b32 s19, s16, 13
    v_add_u32 v14, s19, v{c.vL16}
    v_add_u32 v0, {c.LDS_H}, v14
    s_mul_i32 s19, s16, 2560
    s_add_u32 s19, s19, {LDS_CONV}
    v_lshlrev_b32 v14, 4, v9
    v_add_u32 v14, s19, v14
    v_lshl_add_u32 v{vCR}, v8, 5, v14       ; slot n
    v_add_u32 v{vCW_A}, 64, v{vCR}          ; slot n+2
    v_subrev_u32 v6, 14, v8                 ; n-14
    v_add_u32 v7, 18, v8                    ; n+18
    v_cmp_gt_u32 vcc, 16, v8
    v_cndmask_b32 v6, v7, v6, vcc
    v_subrev_u32 v7, 14, v8
    v_cmp_gt_u32 vcc, 4, v7                 ; 14<=n<=17
    v_mov_b32 v7, 38
    v_cndmask_b32 v6, v7, v6, vcc
    v_lshl_add_u32 v{vCW_B}, v6, 5, v14
    v_lshlrev_b32 v14, 3, v9
    v_add_u32 v14, s29, v14
    v_add_u32 v{vDWR}, {LDS_DW}, v14
    ''')
    vm.wait(td)
    c.stamp()
    k('s_barrier')
    c.xn_read()
    c.stamp()

    NB = 4
    BR = c.vF

    def gemm2(idx, accA, accB):
        toks = {}

        def rd(kb):
            k(f'ds_read_b128 {vr(BR + 4 * (kb % NB), 4)}, v{c.vXnR} offset:{XB + 1024 * kb}')
            toks[kb] = lg.issue()
        for kb in range(NB):
            rd(kb)
        for kb in range(16):
            a = st.get(idx)
            ca = '0' if kb == 0 else vr(accA, 16)
            cb = '0' if kb == 0 else vr(accB, 16)
            k(f'v_mfma_f32_32x32x16_bf16 {vr(accA, 16)}, {a}, {vr(c.vXN + 4 * kb, 4)}, {ca}')
            lg.wait(toks[kb])
            k(f'v_mfma_f32_32x32x16_bf16 {vr(accB, 16)}, {a}, {vr(BR + 4 * (kb % NB), 4)}, {cb}')
            st.refill(idx)
            idx += 1
            if kb + NB < 16:
                rd(kb + NB)
        return idx
    accA, accB = c.vAcc, c.vAcc + 16
    idx = gemm2(0, accA, accB)
    c.stamp()
    vm.wait(tx)
    T = c.vT
    for l in round_pairs(k, [accB + i for i in range(16)], T):
        k(l)
    unpack16(k, XPB, c.vF)
    for i in range(8):
        c._pk('add', accB + 2 * i, c.vF + 2 * i, accB + 2 * i)
    for l in round_pairs(k, [accB + i for i in range(16)], T):
        k(l)
    FB = accB
    residual(c, accA, False)
    c.ln_stats_write(c.vF, 0)
    c.ln_stats_write(FB, 5120)
    lg.wait_all()
    k('s_barrier')
    p = c.ln_normalize(c.vF, 0)
    c.xn_write(p, 0)
    p = c.ln_normalize(FB, 5120)
    c.xn_write(p, XB)
    lg.wait_all()
    k('s_barrier')
    c.xn_read()
    c.stamp()
    Aa, Ab, Ba, Bb = c.vAcc, c.vAcc + 16, c.vS, c.vS + 16
    idx = gemm2(idx, Aa, Ba)
    idx = gemm2(idx, Ab, Bb)
    c.stamp()

    k(f'v_mov_b32 v{T + 6}, 0x{f2u(-LOG2E):08x}')
    k(f'v_mov_b32 v{T + 8}, 1.0')

    def glu(A, B, dst):
        for l in round_pairs(k, [B + i for i in range(16)], T):
            k(l)
        for i in range(8):
            c._pk('mul', B + 2 * i, B + 2 * i, T + 6, mods=c.BC)
        for i in range(16):
            k(f'v_exp_f32 v{B + i}, v{B + i}')
        for l in round_pairs(k, [A + i for i in range(16)], T):
            k(l)
        for i in range(8):
            c._pk('add', B + 2 * i, B + 2 * i, T + 8, mods=c.BC)
        for i in range(16):
            k(f'v_rcp_f32 v{B + i}, v{B + i}')
        for l in round_pairs(k, [B + i for i in range(16)], T):
            k(l)
        for i in range(8):
            c._pk('mul', A + 2 * i, A + 2 * i, B + 2 * i)
        for i in range(8):
            k(f'v_cvt_pk_bf16_f32 v{dst + i}, v{A + 2 * i}, v{A + 2 * i + 1}')
    glu(Aa, Ab, c.vF)
    k(f'ds_write_b128 v{vCW_A}, {vr(c.vF, 4)}')
    k(f'ds_write_b128 v{vCW_A}, {vr(c.vF + 4, 4)} offset:1280')
    glu(Ba, Bb, c.vF + 8)
    k(f'ds_write_b128 v{vCW_B}, {vr(c.vF + 8, 4)}')
    k(f'ds_write_b128 v{vCW_B}, {vr(c.vF + 12, 4)} offset:1280')
    vm.wait(tdw)
    k('s_waitcnt lgkmcnt(0)')
    lg.done = lg.issued
    GA = c.vXN
    DW = c.vXN + 40
    for i in range(5):
        k(f'ds_read_b128 {vr(GA + 8 * i, 4)}, v{vCR} offset:{32 * i}')
        k(f'ds_read_b128 {vr(GA + 8 * i + 4, 4)}, v{vCR} offset:{32 * i + 1280}')
    for i in range(5):
        for q in range(4):
            k(f'ds_read_b64 {vr(DW + 8 * i + 2 * q, 2)}, v{vDWR} offset:{512 * i + 16 * q}')
    k('s_waitcnt lgkmcnt(0)')
    F, S = c.vF, c.vS
    for i in range(5):
        unpack16(k, GA + 8 * i, S)
        unpack16(k, DW + 8 * i, S + 16)
        dst = F if i == 0 else S
        for e in range(8):
            c._pk('mul', dst + 2 * e, S + 2 * e, S + 16 + 2 * e)
        for l in round_pairs(k, [dst + e for e in range(16)], T):
            k(l)
        if i > 0:
            for e in range(8):
                c._pk('add', F + 2 * e, F + 2 * e, S + 2 * e)
            for l in round_pairs(k, [F + e for e in range(16)], T):
                k(l)
    for l in silu_pack(F, S + 16, T):
        k(l)
    k(f'ds_write_b128 v{c.vXnW}, {vr(S + 16, 4)}')
    k(f'ds_write_b128 v{c.vXnW}, {vr(S + 20, 4)} offset:1024')
    k('s_waitcnt lgkmcnt(0)')
    c.stamp()
    k('s_barrier')
    c.xn_read()
    c.stamp()
    idx = gemm_tile(c, st, idx, c.vAcc)
    c.stamp()
    residual(c, c.vAcc, False)
    c.layernorm()
    idx = ff_block(c, st, idx)
    residual(c, c.vAcc, True)
    p = c.layernorm(last=True)
    k(f'''
    v_lshrrev_b32 v8, 4, v{c.vL16}
    v_and_b32 v9, 31, v8
    v_lshrrev_b32 v8, 5, v8
    v_lshlrev_b32 v9, 9, v9
    v_lshl_add_u32 v11, v8, 3, v9
    s_lshl_b32 s18, s2, 14
    s_add_u32 s18, s18, s29
    ''')
    srd(k, 8, 24, 4096000)
    for q in range(4):
        k(f'buffer_store_dwordx2 {vr(p + 2 * q, 2)}, v11, s[8:11], s18 offen offset:{16 * q}')
    c.stamp_out()
    k.label(end)
    return k, 256, 250, LDS_TOTAL
```

```python
import sys
import struct
from asmgen import *

KB = 1024
MB = 1024 * 1024
WS_WP = 0
WS_X1 = 4 * MB
WS_Q = 8 * MB
WS_KV = 16 * MB
WS_ATT = 24 * MB
WS_X2 = 28 * MB
WS_G = 32 * MB
WS_XN = 36 * MB
WS_SIZE = 40 * MB

WP_K1 = 0
WP_K3 = 1408
WP_K4 = 1792

LOG2E = 1.4426950408889634


def f2u(f):
    return struct.unpack('<I', struct.pack('<f', f))[0]


class Cnt:
    def __init__(self, k, name, maxv):
        self.k, self.name, self.maxv = k, name, maxv
        self.issued = 0
        self.done = 0

    def issue(self):
        self.issued += 1
        return self.issued - 1

    def wait(self, tok):
        if tok < self.done:
            return
        n = self.issued - 1 - tok
        n = min(n, self.maxv)
        self.k(f's_waitcnt {self.name}({n})')
        self.done = self.issued - n

    def wait_all(self):
        if self.done < self.issued:
            self.k(f's_waitcnt {self.name}(0)')
            self.done = self.issued


def srd(k, s, ptr, size):
    k(f'''
    s_mov_b32 s{s}, s{ptr}
    s_and_b32 s{s + 1}, s{ptr + 1}, 0xffff
    s_mov_b32 s{s + 2}, {size}
    s_mov_b32 s{s + 3}, 0x20000
    ''')


def gen_k0():
    k = K('pack_kernel')
    mats = [
        ('ff1a', 8, 1024, 256, WP_K1, 176, (2, 7), (0, 3), 0),
        ('ff1b', 16, 256, 1024, WP_K1, 176, (0, 7), (0, 0), 64),
        ('qkv', 24, 768, 256, WP_K1, 176, (0, 7), (3, 3), 128),
        ('wo', 32, 256, 256, WP_K3, 192, (0, 7), (0, 0), 0),
        ('pw1', 40, 512, 256, WP_K3, 192, (0, 7), (3, 1), 16),
        ('pw2', 56, 256, 256, WP_K3, 192, (0, 7), (0, 0), 48),
        ('ff2a', 64, 1024, 256, WP_K3, 192, (2, 7), (0, 3), 64),
        ('ff2b', 72, 256, 1024, WP_K3, 192, (0, 7), (0, 0), 128),
    ]
    NPACK = 368
    NZERO = 24
    NLN = 250
    k(f'''
    s_cmp_ge_u32 s2, {NPACK + NZERO + NLN}
    s_cbranch_scc1 L_pack_end
    s_cmp_lt_u32 s2, {NLN}
    s_cbranch_scc1 L_pack_ln
    s_sub_u32 s2, s2, {NLN}
    s_load_dwordx2 s[6:7], s[0:1], 96
    v_and_b32 v1, 63, v0
    v_lshrrev_b32 v2, 6, v0
    v_and_b32 v3, 31, v0
    v_bfe_u32 v4, v0, 5, 1
    v_readfirstlane_b32 s16, v2
    s_cmp_ge_u32 s2, {NPACK}
    s_cbranch_scc1 L_pack_zero
    ''')
    wg0 = 0
    for i, (nm, arg, N, Kd, base, c1, (s1, m1), (s2_, m2), add) in enumerate(mats):
        nfr = (N // 32) * (Kd // 16)
        nwg = nfr // 8
        lk = 4 if Kd == 256 else 6
        k(f'''
        s_cmp_ge_u32 s2, {wg0 + nwg}
        s_cbranch_scc1 L_pack_next{i}
        s_load_dwordx2 s[4:5], s[0:1], {arg}
        s_sub_u32 s17, s2, {wg0}
        s_lshl_b32 s17, s17, 3
        s_add_u32 s17, s17, s16
        s_lshr_b32 s18, s17, {lk}        ; mt
        s_and_b32 s19, s17, {(1 << lk) - 1}   ; kb
        s_mov_b32 s20, {N * 2}
        s_mov_b32 s21, {N * Kd * 2}      ; size
        s_lshr_b32 s22, s18, {s1}
        s_and_b32 s22, s22, {m1}
        s_mul_i32 s22, s22, {c1}
        s_lshr_b32 s23, s18, {s2_}
        s_and_b32 s23, s23, {m2}
        s_lshl_b32 s23, s23, 4
        s_add_u32 s22, s22, s23
        s_add_u32 s22, s22, s19
        s_add_u32 s22, s22, {base + add}
        s_branch L_pack_common
        ''')
        k.label(f'L_pack_next{i}')
        wg0 += nwg
    assert wg0 == NPACK
    k('s_branch L_pack_end')
    k.label('L_pack_common')
    k('s_waitcnt lgkmcnt(0)')
    k('''
    s_mov_b32 s8, s4
    s_and_b32 s9, s5, 0xffff
    s_mov_b32 s10, s21
    s_mov_b32 s11, 0x20000
    ''')
    srd(k, 12, 6, WS_SIZE)
    k('''
    s_lshl_b32 s24, s19, 4
    v_lshlrev_b32 v5, 2, v4
    v_add_u32 v5, s24, v5
    v_mul_lo_u32 v5, v5, s20
    s_lshl_b32 s25, s18, 5
    v_add_u32 v6, s25, v3
    v_lshlrev_b32 v6, 1, v6
    v_add_u32 v5, v5, v6
    ''')
    rows = [0, 1, 2, 3, 8, 9, 10, 11]
    for j, r in enumerate(rows):
        k(f's_mul_i32 s{30 + j}, s20, {r}')
    for j in range(8):
        k(f'buffer_load_ushort v{16 + j}, v5, s[8:11], s{30 + j} offen')
    k('''
    s_lshl_b32 s22, s22, 10
    v_lshlrev_b32 v7, 4, v1
    s_waitcnt vmcnt(0)
    v_lshl_or_b32 v8, v17, 16, v16
    v_lshl_or_b32 v9, v19, 16, v18
    v_lshl_or_b32 v10, v21, 16, v20
    v_lshl_or_b32 v11, v23, 16, v22
    buffer_store_dwordx4 v[8:11], v7, s[12:15], s22 offen
    s_branch L_pack_end
    ''')
    k.label('L_pack_zero')
    k('s_waitcnt lgkmcnt(0)')
    srd(k, 12, 6, WS_SIZE)
    k(f'''
    s_sub_u32 s17, s2, {NPACK}
    s_mul_i32 s18, s17, 43
    s_lshr_b32 s18, s18, 7            ; bh = z/3   (z<24)
    s_mul_i32 s19, s18, 3
    s_sub_u32 s19, s17, s19           ; z%3
    s_add_u32 s19, s19, 125
    s_lshl_b32 s18, s18, 20
    s_lshl_b32 s19, s19, 13
    s_add_u32 s18, s18, s19
    s_add_u32 s18, s18, {WS_KV}
    v_lshlrev_b32 v7, 4, v0
    v_mov_b32 v8, 0
    v_mov_b32 v9, 0
    v_mov_b32 v10, 0
    v_mov_b32 v11, 0
    buffer_store_dwordx4 v[8:11], v7, s[12:15], s18 offen
    s_branch L_pack_end
    ''')
    k.label('L_pack_ln')
    c = RowCtx(k)
    c.LDS_STAT = 0
    c.LDS_XN = 0
    c.prologue(250, 'L_pack_end')
    k('s_load_dwordx2 s[4:5], s[0:1], 0')
    k(f'''
    v_lshlrev_b32 v11, 9, v8
    v_lshlrev_b32 v12, 3, v9
    v_add_u32 v11, v11, v12
    s_lshl_b32 s18, s2, 14
    s_lshl_b32 s19, s16, 6
    s_add_u32 s19, s18, s19
    s_lshl_b32 s21, s16, 11
    s_add_u32 s20, s18, s21
    s_add_u32 s20, s20, {WS_XN}
    s_waitcnt lgkmcnt(0)
    ''')
    srd(k, 8, 4, 4096000)
    srd(k, 12, 6, WS_SIZE)
    for i in range(4):
        k(f'buffer_load_dwordx2 {vr(c.vXP + 2 * i, 2)}, v11, s[8:11], s19 offen offset:{16 * i}')
    k('s_waitcnt vmcnt(0)')
    unpack16(k, c.vXP, c.vF)
    p = c.layernorm(last=True)
    k(f'''
    buffer_store_dwordx4 {vr(p, 4)}, v{c.vL16}, s[12:15], s20 offen
    buffer_store_dwordx4 {vr(p + 4, 4)}, v{c.vL16}, s[12:15], s20 offen offset:1024
    ''')
    k.label('L_pack_end')
    return k, 72, NPACK + NZERO + NLN


class Stream:
    def __init__(self, k, vm, ring, depth, total, sreg, vlane16, srdw):
        self.k, self.vm, self.ring, self.depth, self.total = k, vm, ring, depth, total
        self.sreg, self.vl, self.srdw = sreg, vlane16, srdw
        self.tok = {}
        self.next = 0

    def issue_one(self):
        i = self.next
        if i >= self.total:
            return
        slot = i % self.depth
        self.k(f'buffer_load_dwordx4 {vr(self.ring + 4 * slot, 4)}, v{self.vl}, {sr(self.srdw, 4)}, s{self.sreg} '
               f'offen offset:{(i % 4) * 1024}')
        self.tok[i] = self.vm.issue()
        if i % 4 == 3:
            self.k(f's_add_u32 s{self.sreg}, s{self.sreg}, 4096')
        self.next += 1

    def prime(self):
        while self.next < min(self.depth, self.total):
            self.issue_one()

    def get(self, i):
        self.vm.wait(self.tok[i])
        return vr(self.ring + 4 * (i % self.depth), 4)

    def refill(self, i):
        assert self.next <= i + self.depth
        while self.next <= i + self.depth and self.next < self.total:
            self.issue_one()


def unpack16(k, src, dst):
    for i in range(8):
        k(f'v_lshlrev_b32 v{dst + 2 * i}, 16, v{src + i}')
        k(f'v_and_b32 v{dst + 2 * i + 1}, 0xffff0000, v{src + i}')


def round_pairs(k, regs, tmp):
    out = []
    for i in range(0, len(regs), 2):
        a, b = regs[i], regs[i + 1]
        out.append(f'v_cvt_pk_bf16_f32 v{tmp}, v{a}, v{b}')
        out.append(f'v_lshlrev_b32 v{a}, 16, v{tmp}')
        out.append(f'v_and_b32 v{b}, 0xffff0000, v{tmp}')
    return out


class RowCtx:
    LDS_H = 0
    LDS_XN = 65536
    LDS_STAT = 65536 + 16384
    LDS_TOTAL = 5120 + 16384 + 65536

    def __init__(self, k):
        self.k = k
        self.vm = Cnt(k, 'vmcnt', 63)
        self.lg = Cnt(k, 'lgkmcnt', 15)
        self.vL16 = 1
        self.vStW = 2
        self.vStR = 3
        self.vXnW = 4
        self.vXnR = 5
        self.vT = 6
        self.vXP = 16
        self.vF = 24
        self.vS = 40
        self.vXN = 72
        self.vAcc = 136
        self.vRing = 168
        self.depth = 22

    stamps = False
    nstamp = 0

    def stamp(self):
        if not self.stamps:
            return
        self.k(f's_memtime s[{60 + 2 * self.nstamp}:{61 + 2 * self.nstamp}]')
        self.nstamp += 1

    def stamp_out(self):
        if not self.stamps:
            return
        k = self.k
        self.stamp()
        k('s_waitcnt lgkmcnt(0)')
        k('''
        s_mov_b32 s52, s38
        s_and_b32 s53, s39, 0xffff
        s_mov_b32 s54, 256
        s_mov_b32 s55, 0x20000
        v_mov_b32 v44, 0
        s_cmp_lg_u32 s2, 7
        s_cbranch_scc1 L_nostamp_''' + k.name)
        k('s_cmp_gt_u32 s16, 1')
        k('s_cbranch_scc1 L_nostamp_' + k.name)
        k('s_lshl_b32 s56, s16, 7')
        for i in range(1, self.nstamp):
            k(f's_sub_u32 s{60 + 2 * i}, s{60 + 2 * i}, s60')
            k(f'v_mov_b32 v40, s{60 + 2 * i}')
            k(f'buffer_store_dword v40, v44, s[52:55], s56 offen offset:{4 * i}')
        k.label('L_nostamp_' + k.name)

    def prologue(self, ntiles, end):
        k = self.k
        k(f'''
        s_cmp_ge_u32 s2, {ntiles}
        s_cbranch_scc1 {end}
        s_load_dwordx2 s[38:39], s[0:1], 88
        s_load_dwordx2 s[6:7], s[0:1], 96''')
        self.stamp()
        k(f'''
        v_lshrrev_b32 v6, 6, v0
        v_and_b32 v7, 63, v0
        v_readfirstlane_b32 s16, v6
        v_lshlrev_b32 v{self.vL16}, 4, v7
        v_and_b32 v8, 31, v0
        v_bfe_u32 v9, v0, 5, 1
        v_mul_u32_u24 v{self.vStR}, 80, v8
        v_lshlrev_b32 v10, 1, v6
        v_add_u32 v10, v10, v9
        v_lshlrev_b32 v10, 2, v10
        v_add_u32 v{self.vStR}, {self.LDS_STAT}, v{self.vStR}
        v_add_u32 v{self.vStW}, v10, v{self.vStR}
        v_add_u32 v{self.vXnR}, {self.LDS_XN}, v{self.vL16}
        v_lshlrev_b32 v10, 11, v6
        v_add_u32 v{self.vXnW}, v10, v{self.vL16}
        v_add_u32 v{self.vXnW}, {self.LDS_XN}, v{self.vXnW}
        ''')

    def _pk(self, op, d, a, b, c=None, mods=''):
        s_ = f'v_pk_{op}_f32 {vr(d, 2)}, {vr(a, 2)}, {vr(b, 2)}'
        if c is not None:
            s_ += f', {vr(c, 2)}'
        self.k(s_ + mods)

    NEGB = ' op_sel_hi:[1,0] neg_lo:[0,1] neg_hi:[0,1]'
    BC = ' op_sel_hi:[1,0]'

    def _sum16(self, X, t):
        for i in range(4):
            self._pk('add', t + 2 * i, X + 4 * i, X + 4 * i + 2)
        self._pk('add', t, t, t + 2)
        self._pk('add', t + 4, t + 4, t + 6)
        self._pk('add', t, t, t + 4)
        self.k(f'v_add_f32 v{t}, v{t}, v{t + 1}')

    def _dev2(self, X, m, t):
        for i in range(8):
            d = t + 2 + 2 * (i & 1)
            self._pk('add', d, X + 2 * i, m, mods=self.NEGB)
            if i == 0:
                self._pk('mul', t, d, d)
            else:
                self._pk('fma', t, d, d, t)
        self.k(f'v_add_f32 v{t}, v{t}, v{t + 1}')

    def ln_stats_write(self, F, so=0):
        k, lg, T = self.k, self.lg, self.vT
        self._sum16(F, T)
        k(f'v_mul_f32 v{T}, 0x3d800000, v{T}')
        self._dev2(F, T, T + 2)
        k(f'ds_write_b32 v{self.vStW}, v{T} offset:{so}')
        lg.issue()
        k(f'ds_write_b32 v{self.vStW}, v{T + 2} offset:{so + 2560}')
        lg.issue()

    def ln_normalize(self, F, so=0):
        k, lg, S, T = self.k, self.lg, self.vS, self.vT
        for q in range(4):
            k(f'ds_read_b128 {vr(S + 4 * q, 4)}, v{self.vStR} offset:{so + 16 * q}')
            lg.issue()
        for q in range(4):
            k(f'ds_read_b128 {vr(S + 16 + 4 * q, 4)}, v{self.vStR} offset:{so + 2560 + 16 * q}')
            t_ = lg.issue()
        lg.wait(t_ - 4)
        self._sum16(S, T)
        k(f'v_mul_f32 v{T}, 0x3d800000, v{T}')
        self._dev2(S, T, T + 2)
        lg.wait_all()
        self._sum16(S + 16, S)
        k(f'v_fmac_f32 v{S}, 0x41800000, v{T + 2}')
        k(f'v_mul_f32 v{T + 2}, 0x3b800000, v{S}')
        k(f'v_cvt_pk_bf16_f32 v{T + 4}, v{T}, v{T + 2}')
        k(f'v_lshlrev_b32 v{T}, 16, v{T + 4}')
        k(f'v_and_b32 v{T + 2}, 0xffff0000, v{T + 4}')
        k(f'v_add_f32 v{T + 2}, 0x3727c5ac, v{T + 2}')
        k(f'v_cvt_pk_bf16_f32 v{T + 4}, v{T + 2}, v{T + 2}')
        k(f'v_lshlrev_b32 v{T + 2}, 16, v{T + 4}')
        k(f'v_sqrt_f32 v{T + 2}, v{T + 2}')
        for i in range(8):
            self._pk('add', S + 2 * i, F + 2 * i, T, mods=self.NEGB)
        k(f'v_cvt_pk_bf16_f32 v{T + 4}, v{T + 2}, v{T + 2}')
        k(f'v_lshlrev_b32 v{T + 2}, 16, v{T + 4}')
        k(f'v_rcp_f32 v{T + 2}, v{T + 2}')
        for l in round_pairs(k, [S + i for i in range(16)], T + 4):
            k(l)
        for i in range(8):
            self._pk('mul', S + 2 * i, S + 2 * i, T + 2, mods=self.BC)
        for i in range(8):
            k(f'v_cvt_pk_bf16_f32 v{S + 16 + i}, v{S + 2 * i}, v{S + 2 * i + 1}')
        return S + 16

    def xn_write(self, p, xo=0):
        k, lg = self.k, self.lg
        k(f'ds_write_b128 v{self.vXnW}, {vr(p, 4)} offset:{xo}')
        lg.issue()
        k(f'ds_write_b128 v{self.vXnW}, {vr(p + 4, 4)} offset:{xo + 1024}')
        lg.issue()

    def xn_read(self):
        k, lg = self.k, self.lg
        for kb in range(16):
            k(f'ds_read_b128 {vr(self.vXN + 4 * kb, 4)}, v{self.vXnR} offset:{1024 * kb}')
            lg.issue()
        lg.wait_all()

    def layernorm(self, last=False):
        k, lg = self.k, self.lg
        self.ln_stats_write(self.vF)
        lg.wait_all()
        self.stamp()
        k('s_barrier')
        self.stamp()
        p = self.ln_normalize(self.vF)
        if last:
            return p
        self.xn_write(p)
        lg.wait_all()
        self.stamp()
        k('s_barrier')
        self.stamp()
        self.xn_read()


def interleave(k, main, filler, per=None):
    n = len(main)
    f = list(filler)
    per = per or -(-len(f) // max(n, 1))
    for g in main:
        k(g)
        for _ in range(per):
            if f:
                k(f.pop(0))
    for x in f:
        k(x)


def silu_pack(acc, dst, t0):
    L = []
    for i in range(0, 16, 2):
        a, b = acc + i, acc + i + 1
        ta, tb = t0 + 1 + (i & 2), t0 + 2 + (i & 2)
        L += [f'v_cvt_pk_bf16_f32 v{t0}, v{a}, v{b}',
              f'v_lshlrev_b32 v{a}, 16, v{t0}',
              f'v_and_b32 v{b}, 0xffff0000, v{t0}',
              f'v_mul_f32 v{ta}, 0x{f2u(-LOG2E):08x}, v{a}',
              f'v_mul_f32 v{tb}, 0x{f2u(-LOG2E):08x}, v{b}',
              f'v_exp_f32 v{ta}, v{ta}',
              f'v_exp_f32 v{tb}, v{tb}',
              f'v_add_f32 v{ta}, 1.0, v{ta}',
              f'v_add_f32 v{tb}, 1.0, v{tb}',
              f'v_rcp_f32 v{ta}, v{ta}',
              f'v_rcp_f32 v{tb}, v{tb}',
              f'v_mul_f32 v{a}, v{a}, v{ta}',
              f'v_mul_f32 v{b}, v{b}, v{tb}',
              f'v_cvt_pk_bf16_f32 v{dst + i // 2}, v{a}, v{b}']
    return L


def ff_block(c, st, widx0):
    k, lg = c.k, c.lg
    idx = widx0
    pend = []
    HP = c.vS
    for mt in range(4):
        acc = c.vAcc + 16 * (mt & 1)
        main = []
        for kb in range(16):
            sub = K('tmp')
            st.k = sub
            st.vm.k = sub
            a = st.get(idx)
            cc = '0' if kb == 0 else vr(acc, 16)
            sub(f'v_mfma_f32_32x32x16_bf16 {vr(acc, 16)}, {a}, {vr(c.vXN + 4 * kb, 4)}, {cc}')
            st.refill(idx)
            idx += 1
            main.append('\n'.join(sub.lines))
        st.k = k
        st.vm.k = k
        interleave(k, main, pend)
        hp = HP + 16 * (mt & 1)
        pend = silu_pack(acc, hp, c.vT + 5 * (mt & 1))
        pend.append(f'ds_write_b128 v{c.vHW}, {vr(hp, 4)} offset:{2048 * mt}')
        pend.append(f'ds_write_b128 v{c.vHW}, {vr(hp + 4, 4)} offset:{2048 * mt + 1024}')
    for x in pend:
        k(x)
    c.stamp()
    k('s_waitcnt lgkmcnt(0)')
    lg.done = lg.issued
    k('s_barrier')
    c.stamp()
    NB = 8
    toks = {}

    def rd(kb):
        k(f'ds_read_b128 {vr(c.vXN + 4 * (kb % NB), 4)}, v{c.vL16} offset:{c.LDS_H + 1024 * kb}')
        toks[kb] = lg.issue()
    for kb in range(NB):
        rd(kb)
    acc = c.vAcc
    for kb in range(64):
        a = st.get(idx)
        lg.wait(toks[kb])
        cc = '0' if kb == 0 else vr(acc, 16)
        k(f'v_mfma_f32_32x32x16_bf16 {vr(acc, 16)}, {a}, {vr(c.vXN + 4 * (kb % NB), 4)}, {cc}')
        st.refill(idx)
        idx += 1
        if kb + NB < 64:
            rd(kb + NB)
    return idx


def gen_k1(stamps=False):
    k = K('ff1qkv_kernel')
    c = RowCtx(k)
    c.stamps = stamps
    vm, lg = c.vm, c.lg
    end = 'L_k1_end'
    c.prologue(250, end)
    c.vHW = 0
    k('s_load_dwordx2 s[4:5], s[0:1], 0')
    k(f'''
    v_lshlrev_b32 v11, 9, v8
    v_lshlrev_b32 v12, 3, v9
    v_add_u32 v11, v11, v12
    s_lshl_b32 s18, s2, 14
    s_lshl_b32 s19, s16, 6
    s_add_u32 s18, s18, s19
    s_mul_i32 s17, s16, {176 * KB}
    s_waitcnt lgkmcnt(0)
    ''')
    srd(k, 8, 4, 4096000)
    srd(k, 12, 6, WS_SIZE)
    k(f'''
    s_lshl_b32 s20, s2, 14
    s_lshl_b32 s21, s16, 11
    s_add_u32 s20, s20, s21
    s_add_u32 s20, s20, {WS_XN}
    s_add_u32 s21, s21, {c.LDS_XN}
    s_mov_b32 m0, s21
    buffer_load_dwordx4 v{c.vL16}, s[12:15], s20 offen lds
    buffer_load_dwordx4 v{c.vL16}, s[12:15], s20 offen offset:1024 lds
    ''')
    vm.issue()
    td = vm.issue()
    k('s_barrier')
    st = Stream(k, vm, c.vRing, c.depth, 176, 17, c.vL16, 12)
    st.prime()
    xt = []
    for i in range(4):
        k(f'buffer_load_dwordx2 {vr(c.vXP + 2 * i, 2)}, v11, s[8:11], s18 offen offset:{16 * i}')
        xt.append(vm.issue())
    c.vHW = 0
    k(f'''
    s_lshl_b32 s19, s16, 13
    v_add_u32 v12, s19, v{c.vL16}
    v_add_u32 v0, {c.LDS_H}, v12
    ''')
    vm.wait(td)
    c.stamp()
    k('s_barrier')
    for kb in range(16):
        k(f'ds_read_b128 {vr(c.vXN + 4 * kb, 4)}, v{c.vXnR} offset:{1024 * kb}')
    k('s_waitcnt lgkmcnt(0)')
    c.stamp()
    idx = ff_block(c, st, 0)
    c.stamp()
    acc = c.vAcc
    for l in round_pairs(k, [acc + i for i in range(16)], c.vT):
        k(l)
    vm.wait(xt[-1])
    unpack16(k, c.vXP, c.vF)
    for i in range(16):
        k(f'v_fmac_f32 v{c.vF + i}, 0.5, v{acc + i}')
    for i in range(8):
        k(f'v_cvt_pk_bf16_f32 v{c.vXP + i}, v{c.vF + 2 * i}, v{c.vF + 2 * i + 1}')
    unpack16(k, c.vXP, c.vF)
    k(f'''
    s_lshl_b32 s20, s2, 14
    s_lshl_b32 s21, s16, 11
    s_add_u32 s20, s20, s21
    s_add_u32 s20, s20, {WS_X1}
    buffer_store_dwordx4 {vr(c.vXP, 4)}, v{c.vL16}, s[12:15], s20 offen
    buffer_store_dwordx4 {vr(c.vXP + 4, 4)}, v{c.vL16}, s[12:15], s20 offen offset:1024
    ''')
    vm.issue()
    vm.issue()
    c.layernorm()
    c.stamp()
    k(f'''
    s_cmp_ge_u32 s2, 125
    s_cselect_b32 s22, 1, 0
    s_mul_i32 s23, s22, 125
    s_sub_u32 s23, s2, s23
    s_lshl_b32 s22, s22, 2
    s_lshr_b32 s24, s16, 1
    s_add_u32 s22, s22, s24          ; bh
    s_and_b32 s25, s16, 1            ; d half
    s_lshl_b32 s25, s25, 11          ; *2KB
    s_lshl_b32 s26, s22, 19          ; bh*512KB
    s_lshl_b32 s27, s23, 12          ; tile*4KB
    s_add_u32 s26, s26, s27
    s_add_u32 s26, s26, s25
    s_add_u32 s26, s26, {WS_Q}       ; Q dest
    s_lshl_b32 s27, s22, 20          ; bh*1MB
    s_lshl_b32 s28, s23, 13          ; tile*8KB
    s_add_u32 s27, s27, s28
    s_add_u32 s27, s27, s25
    s_add_u32 s27, s27, {WS_KV}      ; K dest
    s_add_u32 s28, s27, 4096         ; V dest
    ''')
    pend = []
    QS = 0.125 * LOG2E
    for t in range(3):
        acc = c.vAcc + 16 * (t & 1)
        main = []
        for kb in range(16):
            sub = K('tmp')
            st.k = sub
            st.vm.k = sub
            a = st.get(idx)
            cc = '0' if kb == 0 else vr(acc, 16)
            xb = vr(c.vXN + 4 * kb, 4)
            if t < 2:
                sub(f'v_mfma_f32_32x32x16_bf16 {vr(acc, 16)}, {a}, {xb}, {cc}')
            else:
                sub(f'v_mfma_f32_32x32x16_bf16 {vr(acc, 16)}, {xb}, {a}, {cc}')
            st.refill(idx)
            idx += 1
            main.append('\n'.join(sub.lines))
        st.k = k
        st.vm.k = k
        interleave(k, main, pend)
        hp = c.vS + 16 * (t & 1)
        pend = []
        if t == 0:
            for i in range(16):
                pend.append(f'v_mul_f32 v{acc + i}, 0x{f2u(QS):08x}, v{acc + i}')
        for i in range(8):
            pend.append(f'v_cvt_pk_bf16_f32 v{hp + i}, v{acc + 2 * i}, v{acc + 2 * i + 1}')
        pend.append(f'buffer_store_dwordx4 {vr(hp, 4)}, v{c.vL16}, s[12:15], s{26 + t} offen')
        pend.append(f'buffer_store_dwordx4 {vr(hp + 4, 4)}, v{c.vL16}, s[12:15], s{26 + t} offen offset:1024')
        if t < 2:
            stores = pend[-2:]
            pend = pend[:-2]
            pend_st = stores
        else:
            pend_st = pend[-2:]
            pend = pend[:-2]
        for x in pend:
            k(x)
        for x in pend_st:
            k(x)
            vm.issue()
        pend = []
    c.stamp_out()
    k.label(end)
    return k, 256, 250, RowCtx.LDS_TOTAL


def build(path):
    hdr = open('standalone__conformer_family_zipformer__speech.s.ref').read().split(
        '; Override')[0]
    ks = []
    k0, vg0, g0 = gen_k0()
    ks.append((k0, vg0, g0, 512, 8192))
    k1, vg1, g1, lds1 = gen_k1()
    ks.append((k1, vg1, g1, 512, lds1))
    from gen_attn import gen_k2
    k2, vg2, g2, lds2 = gen_k2()
    ks.append((k2, vg2, g2, 512, lds2))
    from gen_k34m import gen_k34
    k3, vg3, g3, lds3 = gen_k34()
    ks.append((k3, vg3, g3, 512, lds3))
    open(path, 'w').write(module_text(hdr, ks))


if __name__ == '__main__':
    build(sys.argv[1] if len(sys.argv) > 1 else 'k.s')
```

```python
from asmgen import *
from gen import *
from gen_k34 import gemm_tile, residual


def gen_k34(stamps=False, PRIME=6, name='post_kernel'):
    k = K(name)
    c = RowCtx(k)
    c.stamps = stamps
    c.depth = 21
    c.LDS_STAT = 98304
    LDS_CONV = 98304 + 10240
    LDS_DW = LDS_CONV + 20480
    LDS_TOTAL = LDS_DW + 3072
    XB = 16384
    vm, lg = c.vm, c.lg
    end = 'L_k34_end_' + name
    c.prologue(250, end)
    k('s_load_dwordx2 s[4:5], s[0:1], 48')
    k('s_load_dwordx2 s[24:25], s[0:1], 80')
    vB = 15
    k(f'''
    s_lshl_b32 s18, s2, 14
    s_lshl_b32 s21, s16, 11           ; w*2KB
    s_add_u32 s19, s18, s21
    s_add_u32 s20, s19, {WS_X1}       ; x1 A
    s_add_u32 s19, s19, {WS_ATT}      ; att A
    s_add_u32 s22, s21, {WS_ATT}
    s_add_u32 s23, s21, {WS_X1}       ; x1 B
    s_mul_i32 s17, s16, {192 * KB}
    s_add_u32 s17, s17, {WP_K3 * KB}
    s_cmp_ge_u32 s2, 125
    s_cselect_b32 s26, 4000, 0
    s_lshl_b32 s27, s2, 5
    s_sub_u32 s28, s27, s26
    s_lshl_b32 s29, s16, 6            ; w*64 bytes
    v_subrev_u32 v12, 16, v8          ; n-16
    v_add_u32 v13, 16, v8             ; n+16
    v_cmp_gt_u32 vcc, 16, v8
    v_cndmask_b32 v12, v13, v12, vcc  ; delta
    v_add_u32 v13, s28, v12
    v_add_u32 v12, s27, v12
    v_lshrrev_b32 v14, 5, v12
    v_lshlrev_b32 v14, 14, v14
    v_and_b32 v12, 31, v12
    v_lshl_add_u32 v12, v9, 5, v12
    v_lshl_add_u32 v14, v12, 4, v14
    v_mov_b32 v12, 0x80000000
    v_cmp_gt_u32 vcc, 4000, v13
    v_cndmask_b32 v{vB}, v12, v14, vcc
    s_add_u32 s30, s21, {c.LDS_XN}
    s_waitcnt lgkmcnt(0)
    ''')
    srd(k, 8, 4, 2560)
    srd(k, 12, 6, WS_SIZE)
    k(f'''
    s_mov_b32 m0, s30
    buffer_load_dwordx4 v{c.vL16}, s[12:15], s19 offen lds
    buffer_load_dwordx4 v{c.vL16}, s[12:15], s19 offen offset:1024 lds
    s_add_u32 s30, s30, {XB}
    s_mov_b32 m0, s30
    buffer_load_dwordx4 v{vB}, s[12:15], s22 offen lds
    buffer_load_dwordx4 v{vB}, s[12:15], s22 offen offset:1024 lds
    ''')
    tdl = [vm.issue() for _ in range(4)]
    td = tdl[-1]
    XPB = c.vS + 24
    k(f'buffer_load_dwordx4 {vr(c.vXP, 4)}, v{c.vL16}, s[12:15], s20 offen')
    k(f'buffer_load_dwordx4 {vr(c.vXP + 4, 4)}, v{c.vL16}, s[12:15], s20 offen offset:1024')
    k(f'buffer_load_dwordx4 {vr(XPB, 4)}, v{vB}, s[12:15], s23 offen')
    k(f'buffer_load_dwordx4 {vr(XPB + 4, 4)}, v{vB}, s[12:15], s23 offen offset:1024')
    for _ in range(4):
        tx = vm.issue()
    k(f's_mov_b32 s30, {LDS_DW}')
    k('s_mov_b32 m0, s30')
    for j in range(3):
        k(f'buffer_load_dwordx4 v{c.vL16}, s[8:11], 0 offen offset:{1024 * j} lds')
        tdw = vm.issue()
    k('s_barrier')
    st = Stream(k, vm, c.vRing, c.depth, 192, 17, c.vL16, 12)
    st.prime(PRIME)
    st.maxper = 2
    c.vHW = 0
    vCW_A, vCW_B, vCR, vDWR = 252, 253, 254, 255
    k(f'''
    s_lshl_b32 s19, s16, 13
    v_add_u32 v14, s19, v{c.vL16}
    v_add_u32 v0, {c.LDS_H}, v14
    s_mul_i32 s19, s16, 2560
    s_add_u32 s19, s19, {LDS_CONV}
    v_lshlrev_b32 v14, 4, v9
    v_add_u32 v14, s19, v14
    v_lshl_add_u32 v{vCR}, v8, 5, v14       ; slot n
    v_add_u32 v{vCW_A}, 64, v{vCR}          ; slot n+2
    v_subrev_u32 v6, 14, v8                 ; n-14
    v_add_u32 v7, 18, v8                    ; n+18
    v_cmp_gt_u32 vcc, 16, v8
    v_cndmask_b32 v6, v7, v6, vcc
    v_subrev_u32 v7, 14, v8
    v_cmp_gt_u32 vcc, 4, v7                 ; 14<=n<=17
    v_mov_b32 v7, 38
    v_cndmask_b32 v6, v7, v6, vcc
    v_lshl_add_u32 v{vCW_B}, v6, 5, v14
    v_lshlrev_b32 v14, 3, v9
    v_add_u32 v14, s29, v14
    v_add_u32 v{vDWR}, {LDS_DW}, v14
    ''')
    c.stamp()
    vm.wait(tdl[0])
    c.stamp()
    vm.wait(tdl[1])
    c.stamp()
    vm.wait(td)
    c.stamp()
    k('s_barrier')
    c.xn_read()
    c.stamp()

    NB = 4
    BR = c.vF

    def gemm2(idx, accA, accB):
        toks = {}

        def rd(kb):
            k(f'ds_read_b128 {vr(BR + 4 * (kb % NB), 4)}, v{c.vXnR} offset:{XB + 1024 * kb}')
            toks[kb] = lg.issue()
        for kb in range(NB):
            rd(kb)
        for kb in range(16):
            a = st.get(idx)
            ca = '0' if kb == 0 else vr(accA, 16)
            cb = '0' if kb == 0 else vr(accB, 16)
            k(f'v_mfma_f32_32x32x16_bf16 {vr(accA, 16)}, {a}, {vr(c.vXN + 4 * kb, 4)}, {ca}')
            lg.wait(toks[kb])
            k(f'v_mfma_f32_32x32x16_bf16 {vr(accB, 16)}, {a}, {vr(BR + 4 * (kb % NB), 4)}, {cb}')
            st.refill(idx)
            idx += 1
            if kb + NB < 16:
                rd(kb + NB)
        return idx
    accA, accB = c.vAcc, c.vAcc + 16
    idx = gemm2(0, accA, accB)
    c.stamp()
    vm.wait(tx)
    T = c.vT
    for l in round_pairs(k, [accB + i for i in range(16)], T):
        k(l)
    unpack16(k, XPB, c.vF)
    for i in range(8):
        c._pk('add', accB + 2 * i, c.vF + 2 * i, accB + 2 * i)
    for l in round_pairs(k, [accB + i for i in range(16)], T):
        k(l)
    FB = accB
    residual(c, accA, False)
    c.ln_stats_write(c.vF, 0)
    c.ln_stats_write(FB, 5120)
    lg.wait_all()
    k('s_barrier')
    p = c.ln_normalize(c.vF, 0)
    c.xn_write(p, 0)
    p = c.ln_normalize(FB, 5120)
    c.xn_write(p, XB)
    lg.wait_all()
    k('s_barrier')
    c.xn_read()
    c.stamp()
    Aa, Ab, Ba, Bb = c.vAcc, c.vAcc + 16, c.vS, c.vS + 16
    idx = gemm2(idx, Aa, Ba)
    idx = gemm2(idx, Ab, Bb)
    c.stamp()

    k(f'v_mov_b32 v{T + 6}, 0x{f2u(-LOG2E):08x}')
    k(f'v_mov_b32 v{T + 8}, 1.0')

    def glu(A, B, dst):
        for l in round_pairs(k, [B + i for i in range(16)], T):
            k(l)
        for i in range(8):
            c._pk('mul', B + 2 * i, B + 2 * i, T + 6, mods=c.BC)
        for i in range(16):
            k(f'v_exp_f32 v{B + i}, v{B + i}')
        for l in round_pairs(k, [A + i for i in range(16)], T):
            k(l)
        for i in range(8):
            c._pk('add', B + 2 * i, B + 2 * i, T + 8, mods=c.BC)
        for i in range(16):
            k(f'v_rcp_f32 v{B + i}, v{B + i}')
        for l in round_pairs(k, [B + i for i in range(16)], T):
            k(l)
        for i in range(8):
            c._pk('mul', A + 2 * i, A + 2 * i, B + 2 * i)
        for i in range(8):
            k(f'v_cvt_pk_bf16_f32 v{dst + i}, v{A + 2 * i}, v{A + 2 * i + 1}')
    glu(Aa, Ab, c.vF)
    k(f'ds_write_b128 v{vCW_A}, {vr(c.vF, 4)}')
    k(f'ds_write_b128 v{vCW_A}, {vr(c.vF + 4, 4)} offset:1280')
    glu(Ba, Bb, c.vF + 8)
    k(f'ds_write_b128 v{vCW_B}, {vr(c.vF + 8, 4)}')
    k(f'ds_write_b128 v{vCW_B}, {vr(c.vF + 12, 4)} offset:1280')
    vm.wait(tdw)
    k('s_waitcnt lgkmcnt(0)')
    lg.done = lg.issued
    GA = c.vXN
    DW = c.vXN + 40
    for i in range(5):
        k(f'ds_read_b128 {vr(GA + 8 * i, 4)}, v{vCR} offset:{32 * i}')
        k(f'ds_read_b128 {vr(GA + 8 * i + 4, 4)}, v{vCR} offset:{32 * i + 1280}')
    for i in range(5):
        for q in range(4):
            k(f'ds_read_b64 {vr(DW + 8 * i + 2 * q, 2)}, v{vDWR} offset:{512 * i + 16 * q}')
    k('s_waitcnt lgkmcnt(0)')
    F, S = c.vF, c.vS
    for i in range(5):
        unpack16(k, GA + 8 * i, S)
        unpack16(k, DW + 8 * i, S + 16)
        dst = F if i == 0 else S
        for e in range(8):
            c._pk('mul', dst + 2 * e, S + 2 * e, S + 16 + 2 * e)
        for l in round_pairs(k, [dst + e for e in range(16)], T):
            k(l)
        if i > 0:
            for e in range(8):
                c._pk('add', F + 2 * e, F + 2 * e, S + 2 * e)
            for l in round_pairs(k, [F + e for e in range(16)], T):
                k(l)
    for l in silu_pack(F, S + 16, T):
        k(l)
    k(f'ds_write_b128 v{c.vXnW}, {vr(S + 16, 4)}')
    k(f'ds_write_b128 v{c.vXnW}, {vr(S + 20, 4)} offset:1024')
    k('s_waitcnt lgkmcnt(0)')
    c.stamp()
    k('s_barrier')
    c.xn_read()
    c.stamp()
    idx = gemm_tile(c, st, idx, c.vAcc)
    c.stamp()
    residual(c, c.vAcc, False)
    c.layernorm()
    idx = ff_block(c, st, idx)
    residual(c, c.vAcc, True)
    p = c.layernorm(last=True)
    k(f'''
    v_lshrrev_b32 v8, 4, v{c.vL16}
    v_and_b32 v9, 31, v8
    v_lshrrev_b32 v8, 5, v8
    v_lshlrev_b32 v9, 9, v9
    v_lshl_add_u32 v11, v8, 3, v9
    s_lshl_b32 s18, s2, 14
    s_add_u32 s18, s18, s29
    ''')
    srd(k, 8, 24, 4096000)
    for q in range(4):
        k(f'buffer_store_dwordx2 {vr(p + 2 * q, 2)}, v11, s[8:11], s18 offen offset:{16 * q}')
    c.stamp_out()
    k.label(end)
    return k, 256, 250, LDS_TOTAL
```

```python
import sys
import struct
from asmgen import *

KB = 1024
MB = 1024 * 1024
WS_WP = 0
WS_X1 = 4 * MB
WS_Q = 8 * MB
WS_KV = 16 * MB
WS_ATT = 24 * MB
WS_X2 = 28 * MB
WS_G = 32 * MB
WS_XN = 36 * MB
WS_SIZE = 40 * MB

WP_K1 = 0
WP_K3 = 1408
WP_K4 = 1792

LOG2E = 1.4426950408889634


def f2u(f):
    return struct.unpack('<I', struct.pack('<f', f))[0]


class Cnt:
    def __init__(self, k, name, maxv):
        self.k, self.name, self.maxv = k, name, maxv
        self.issued = 0
        self.done = 0

    def issue(self):
        self.issued += 1
        return self.issued - 1

    def wait(self, tok):
        if tok < self.done:
            return
        n = self.issued - 1 - tok
        n = min(n, self.maxv)
        self.k(f's_waitcnt {self.name}({n})')
        self.done = self.issued - n

    def wait_all(self):
        if self.done < self.issued:
            self.k(f's_waitcnt {self.name}(0)')
            self.done = self.issued


def srd(k, s, ptr, size):
    k(f'''
    s_mov_b32 s{s}, s{ptr}
    s_and_b32 s{s + 1}, s{ptr + 1}, 0xffff
    s_mov_b32 s{s + 2}, {size}
    s_mov_b32 s{s + 3}, 0x20000
    ''')


def gen_k0():
    k = K('pack_kernel')
    mats = [
        ('ff1a', 8, 1024, 256, WP_K1, 176, (2, 7), (0, 3), 0),
        ('ff1b', 16, 256, 1024, WP_K1, 176, (0, 7), (0, 0), 64),
        ('qkv', 24, 768, 256, WP_K1, 176, (0, 7), (3, 3), 128),
        ('wo', 32, 256, 256, WP_K3, 192, (0, 7), (0, 0), 0),
        ('pw1', 40, 512, 256, WP_K3, 192, (0, 7), (3, 1), 16),
        ('pw2', 56, 256, 256, WP_K3, 192, (0, 7), (0, 0), 48),
        ('ff2a', 64, 1024, 256, WP_K3, 192, (2, 7), (0, 3), 64),
        ('ff2b', 72, 256, 1024, WP_K3, 192, (0, 7), (0, 0), 128),
    ]
    NPACK = 368
    NZERO = 24
    NLN = 250
    k(f'''
    s_cmp_ge_u32 s2, {NPACK + NZERO + NLN}
    s_cbranch_scc1 L_pack_end
    s_cmp_lt_u32 s2, {NLN}
    s_cbranch_scc1 L_pack_ln
    s_sub_u32 s2, s2, {NLN}
    s_load_dwordx2 s[6:7], s[0:1], 96
    v_and_b32 v1, 63, v0
    v_lshrrev_b32 v2, 6, v0
    v_and_b32 v3, 31, v0
    v_bfe_u32 v4, v0, 5, 1
    v_readfirstlane_b32 s16, v2
    s_cmp_ge_u32 s2, {NPACK}
    s_cbranch_scc1 L_pack_zero
    ''')
    wg0 = 0
    for i, (nm, arg, N, Kd, base, c1, (s1, m1), (s2_, m2), add) in enumerate(mats):
        nfr = (N // 32) * (Kd // 16)
        nwg = nfr // 8
        lk = 4 if Kd == 256 else 6
        k(f'''
        s_cmp_ge_u32 s2, {wg0 + nwg}
        s_cbranch_scc1 L_pack_next{i}
        s_load_dwordx2 s[4:5], s[0:1], {arg}
        s_sub_u32 s17, s2, {wg0}
        s_lshl_b32 s17, s17, 3
        s_add_u32 s17, s17, s16
        s_lshr_b32 s18, s17, {lk}        ; mt
        s_and_b32 s19, s17, {(1 << lk) - 1}   ; kb
        s_mov_b32 s20, {N * 2}
        s_mov_b32 s21, {N * Kd * 2}      ; size
        s_lshr_b32 s22, s18, {s1}
        s_and_b32 s22, s22, {m1}
        s_mul_i32 s22, s22, {c1}
        s_lshr_b32 s23, s18, {s2_}
        s_and_b32 s23, s23, {m2}
        s_lshl_b32 s23, s23, 4
        s_add_u32 s22, s22, s23
        s_add_u32 s22, s22, s19
        s_add_u32 s22, s22, {base + add}
        s_branch L_pack_common
        ''')
        k.label(f'L_pack_next{i}')
        wg0 += nwg
    assert wg0 == NPACK
    k('s_branch L_pack_end')
    k.label('L_pack_common')
    k('s_waitcnt lgkmcnt(0)')
    k('''
    s_mov_b32 s8, s4
    s_and_b32 s9, s5, 0xffff
    s_mov_b32 s10, s21
    s_mov_b32 s11, 0x20000
    ''')
    srd(k, 12, 6, WS_SIZE)
    k('''
    s_lshl_b32 s24, s19, 4
    v_lshlrev_b32 v5, 2, v4
    v_add_u32 v5, s24, v5
    v_mul_lo_u32 v5, v5, s20
    s_lshl_b32 s25, s18, 5
    v_add_u32 v6, s25, v3
    v_lshlrev_b32 v6, 1, v6
    v_add_u32 v5, v5, v6
    ''')
    rows = [0, 1, 2, 3, 8, 9, 10, 11]
    for j, r in enumerate(rows):
        k(f's_mul_i32 s{30 + j}, s20, {r}')
    for j in range(8):
        k(f'buffer_load_ushort v{16 + j}, v5, s[8:11], s{30 + j} offen')
    k('''
    s_lshl_b32 s22, s22, 10
    v_lshlrev_b32 v7, 4, v1
    s_waitcnt vmcnt(0)
    v_lshl_or_b32 v8, v17, 16, v16
    v_lshl_or_b32 v9, v19, 16, v18
    v_lshl_or_b32 v10, v21, 16, v20
    v_lshl_or_b32 v11, v23, 16, v22
    buffer_store_dwordx4 v[8:11], v7, s[12:15], s22 offen
    s_branch L_pack_end
    ''')
    k.label('L_pack_zero')
    k('s_waitcnt lgkmcnt(0)')
    srd(k, 12, 6, WS_SIZE)
    k(f'''
    s_sub_u32 s17, s2, {NPACK}
    s_mul_i32 s18, s17, 43
    s_lshr_b32 s18, s18, 7            ; bh = z/3   (z<24)
    s_mul_i32 s19, s18, 3
    s_sub_u32 s19, s17, s19           ; z%3
    s_add_u32 s19, s19, 125
    s_lshl_b32 s18, s18, 20
    s_lshl_b32 s19, s19, 13
    s_add_u32 s18, s18, s19
    s_add_u32 s18, s18, {WS_KV}
    v_lshlrev_b32 v7, 4, v0
    v_mov_b32 v8, 0
    v_mov_b32 v9, 0
    v_mov_b32 v10, 0
    v_mov_b32 v11, 0
    buffer_store_dwordx4 v[8:11], v7, s[12:15], s18 offen
    s_branch L_pack_end
    ''')
    k.label('L_pack_ln')
    c = RowCtx(k)
    c.LDS_STAT = 0
    c.LDS_XN = 0
    c.prologue(250, 'L_pack_end')
    k('s_load_dwordx2 s[4:5], s[0:1], 0')
    k(f'''
    v_lshlrev_b32 v11, 9, v8
    v_lshlrev_b32 v12, 3, v9
    v_add_u32 v11, v11, v12
    s_lshl_b32 s18, s2, 14
    s_lshl_b32 s19, s16, 6
    s_add_u32 s19, s18, s19
    s_lshl_b32 s21, s16, 11
    s_add_u32 s20, s18, s21
    s_add_u32 s20, s20, {WS_XN}
    s_waitcnt lgkmcnt(0)
    ''')
    srd(k, 8, 4, 4096000)
    srd(k, 12, 6, WS_SIZE)
    for i in range(4):
        k(f'buffer_load_dwordx2 {vr(c.vXP + 2 * i, 2)}, v11, s[8:11], s19 offen offset:{16 * i}')
    k('s_waitcnt vmcnt(0)')
    unpack16(k, c.vXP, c.vF)
    p = c.layernorm(last=True)
    k(f'''
    buffer_store_dwordx4 {vr(p, 4)}, v{c.vL16}, s[12:15], s20 offen
    buffer_store_dwordx4 {vr(p + 4, 4)}, v{c.vL16}, s[12:15], s20 offen offset:1024
    ''')
    k.label('L_pack_end')
    return k, 72, NPACK + NZERO + NLN


class Stream:
    def __init__(self, k, vm, ring, depth, total, sreg, vlane16, srdw):
        self.k, self.vm, self.ring, self.depth, self.total = k, vm, ring, depth, total
        self.sreg, self.vl, self.srdw = sreg, vlane16, srdw
        self.tok = {}
        self.next = 0

    def issue_one(self):
        i = self.next
        if i >= self.total:
            return
        slot = i % self.depth
        self.k(f'buffer_load_dwordx4 {vr(self.ring + 4 * slot, 4)}, v{self.vl}, {sr(self.srdw, 4)}, s{self.sreg} '
               f'offen offset:{(i % 4) * 1024}')
        self.tok[i] = self.vm.issue()
        if i % 4 == 3:
            self.k(f's_add_u32 s{self.sreg}, s{self.sreg}, 4096')
        self.next += 1

    maxper = 1000

    def prime(self, n=None):
        lim = self.depth if n is None else n
        while self.next < min(lim, self.total):
            self.issue_one()

    def get(self, i):
        self.vm.wait(self.tok[i])
        return vr(self.ring + 4 * (i % self.depth), 4)

    def refill(self, i):
        assert self.next <= i + self.depth
        cnt = 0
        while self.next <= i + self.depth and self.next < self.total and cnt < self.maxper:
            self.issue_one()
            cnt += 1


def unpack16(k, src, dst):
    for i in range(8):
        k(f'v_lshlrev_b32 v{dst + 2 * i}, 16, v{src + i}')
        k(f'v_and_b32 v{dst + 2 * i + 1}, 0xffff0000, v{src + i}')


def round_pairs(k, regs, tmp):
    out = []
    for i in range(0, len(regs), 2):
        a, b = regs[i], regs[i + 1]
        out.append(f'v_cvt_pk_bf16_f32 v{tmp}, v{a}, v{b}')
        out.append(f'v_lshlrev_b32 v{a}, 16, v{tmp}')
        out.append(f'v_and_b32 v{b}, 0xffff0000, v{tmp}')
    return out


class RowCtx:
    LDS_H = 0
    LDS_XN = 65536
    LDS_STAT = 65536 + 16384
    LDS_TOTAL = 5120 + 16384 + 65536

    def __init__(self, k):
        self.k = k
        self.vm = Cnt(k, 'vmcnt', 63)
        self.lg = Cnt(k, 'lgkmcnt', 15)
        self.vL16 = 1
        self.vStW = 2
        self.vStR = 3
        self.vXnW = 4
        self.vXnR = 5
        self.vT = 6
        self.vXP = 16
        self.vF = 24
        self.vS = 40
        self.vXN = 72
        self.vAcc = 136
        self.vRing = 168
        self.depth = 22

    stamps = False
    nstamp = 0

    def stamp(self):
        if not self.stamps:
            return
        self.k(f's_memtime s[{60 + 2 * self.nstamp}:{61 + 2 * self.nstamp}]')
        self.nstamp += 1

    def stamp_out(self):
        if not self.stamps:
            return
        k = self.k
        self.stamp()
        k('s_waitcnt lgkmcnt(0)')
        k('''
        s_mov_b32 s52, s38
        s_and_b32 s53, s39, 0xffff
        s_mov_b32 s54, 256
        s_mov_b32 s55, 0x20000
        v_mov_b32 v44, 0
        s_cmp_lg_u32 s2, 7
        s_cbranch_scc1 L_nostamp_''' + k.name)
        k('s_cmp_gt_u32 s16, 1')
        k('s_cbranch_scc1 L_nostamp_' + k.name)
        k('s_lshl_b32 s56, s16, 7')
        for i in range(1, self.nstamp):
            k(f's_sub_u32 s{60 + 2 * i}, s{60 + 2 * i}, s60')
            k(f'v_mov_b32 v40, s{60 + 2 * i}')
            k(f'buffer_store_dword v40, v44, s[52:55], s56 offen offset:{4 * i}')
        k.label('L_nostamp_' + k.name)

    def prologue(self, ntiles, end):
        k = self.k
        k(f'''
        s_cmp_ge_u32 s2, {ntiles}
        s_cbranch_scc1 {end}
        s_load_dwordx2 s[6:7], s[0:1], 96''')
        if self.stamps:
            k('s_load_dwordx2 s[38:39], s[0:1], 88')
        self.stamp()
        k(f'''
        v_lshrrev_b32 v6, 6, v0
        v_and_b32 v7, 63, v0
        v_readfirstlane_b32 s16, v6
        v_lshlrev_b32 v{self.vL16}, 4, v7
        v_and_b32 v8, 31, v0
        v_bfe_u32 v9, v0, 5, 1
        v_mul_u32_u24 v{self.vStR}, 80, v8
        v_lshlrev_b32 v10, 1, v6
        v_add_u32 v10, v10, v9
        v_lshlrev_b32 v10, 2, v10
        v_add_u32 v{self.vStR}, {self.LDS_STAT}, v{self.vStR}
        v_add_u32 v{self.vStW}, v10, v{self.vStR}
        v_add_u32 v{self.vXnR}, {self.LDS_XN}, v{self.vL16}
        v_lshlrev_b32 v10, 11, v6
        v_add_u32 v{self.vXnW}, v10, v{self.vL16}
        v_add_u32 v{self.vXnW}, {self.LDS_XN}, v{self.vXnW}
        ''')

    def _pk(self, op, d, a, b, c=None, mods=''):
        s_ = f'v_pk_{op}_f32 {vr(d, 2)}, {vr(a, 2)}, {vr(b, 2)}'
        if c is not None:
            s_ += f', {vr(c, 2)}'
        self.k(s_ + mods)

    NEGB = ' op_sel_hi:[1,0] neg_lo:[0,1] neg_hi:[0,1]'
    BC = ' op_sel_hi:[1,0]'

    def _sum16(self, X, t):
        for i in range(4):
            self._pk('add', t + 2 * i, X + 4 * i, X + 4 * i + 2)
        self._pk('add', t, t, t + 2)
        self._pk('add', t + 4, t + 4, t + 6)
        self._pk('add', t, t, t + 4)
        self.k(f'v_add_f32 v{t}, v{t}, v{t + 1}')

    def _dev2(self, X, m, t):
        for i in range(8):
            d = t + 2 + 2 * (i & 1)
            self._pk('add', d, X + 2 * i, m, mods=self.NEGB)
            if i == 0:
                self._pk('mul', t, d, d)
            else:
                self._pk('fma', t, d, d, t)
        self.k(f'v_add_f32 v{t}, v{t}, v{t + 1}')

    def ln_stats_write(self, F, so=0):
        k, lg, T = self.k, self.lg, self.vT
        self._sum16(F, T)
        k(f'v_mul_f32 v{T}, 0x3d800000, v{T}')
        self._dev2(F, T, T + 2)
        k(f'ds_write_b32 v{self.vStW}, v{T} offset:{so}')
        lg.issue()
        k(f'ds_write_b32 v{self.vStW}, v{T + 2} offset:{so + 2560}')
        lg.issue()

    def ln_normalize(self, F, so=0):
        k, lg, S, T = self.k, self.lg, self.vS, self.vT
        for q in range(4):
            k(f'ds_read_b128 {vr(S + 4 * q, 4)}, v{self.vStR} offset:{so + 16 * q}')
            lg.issue()
        for q in range(4):
            k(f'ds_read_b128 {vr(S + 16 + 4 * q, 4)}, v{self.vStR} offset:{so + 2560 + 16 * q}')
            t_ = lg.issue()
        lg.wait(t_ - 4)
        self._sum16(S, T)
        k(f'v_mul_f32 v{T}, 0x3d800000, v{T}')
        self._dev2(S, T, T + 2)
        lg.wait_all()
        self._sum16(S + 16, S)
        k(f'v_fmac_f32 v{S}, 0x41800000, v{T + 2}')
        k(f'v_mul_f32 v{T + 2}, 0x3b800000, v{S}')
        k(f'v_cvt_pk_bf16_f32 v{T + 4}, v{T}, v{T + 2}')
        k(f'v_lshlrev_b32 v{T}, 16, v{T + 4}')
        k(f'v_and_b32 v{T + 2}, 0xffff0000, v{T + 4}')
        k(f'v_add_f32 v{T + 2}, 0x3727c5ac, v{T + 2}')
        k(f'v_cvt_pk_bf16_f32 v{T + 4}, v{T + 2}, v{T + 2}')
        k(f'v_lshlrev_b32 v{T + 2}, 16, v{T + 4}')
        k(f'v_sqrt_f32 v{T + 2}, v{T + 2}')
        for i in range(8):
            self._pk('add', S + 2 * i, F + 2 * i, T, mods=self.NEGB)
        k(f'v_cvt_pk_bf16_f32 v{T + 4}, v{T + 2}, v{T + 2}')
        k(f'v_lshlrev_b32 v{T + 2}, 16, v{T + 4}')
        k(f'v_rcp_f32 v{T + 2}, v{T + 2}')
        for l in round_pairs(k, [S + i for i in range(16)], T + 4):
            k(l)
        for i in range(8):
            self._pk('mul', S + 2 * i, S + 2 * i, T + 2, mods=self.BC)
        for i in range(8):
            k(f'v_cvt_pk_bf16_f32 v{S + 16 + i}, v{S + 2 * i}, v{S + 2 * i + 1}')
        return S + 16

    def xn_write(self, p, xo=0):
        k, lg = self.k, self.lg
        k(f'ds_write_b128 v{self.vXnW}, {vr(p, 4)} offset:{xo}')
        lg.issue()
        k(f'ds_write_b128 v{self.vXnW}, {vr(p + 4, 4)} offset:{xo + 1024}')
        lg.issue()

    def xn_read(self):
        k, lg = self.k, self.lg
        for kb in range(16):
            k(f'ds_read_b128 {vr(self.vXN + 4 * kb, 4)}, v{self.vXnR} offset:{1024 * kb}')
            lg.issue()
        lg.wait_all()

    def layernorm(self, last=False):
        k, lg = self.k, self.lg
        self.ln_stats_write(self.vF)
        lg.wait_all()
        self.stamp()
        k('s_barrier')
        self.stamp()
        p = self.ln_normalize(self.vF)
        if last:
            return p
        self.xn_write(p)
        lg.wait_all()
        self.stamp()
        k('s_barrier')
        self.stamp()
        self.xn_read()


def interleave(k, main, filler, per=None):
    n = len(main)
    f = list(filler)
    per = per or -(-len(f) // max(n, 1))
    for g in main:
        k(g)
        for _ in range(per):
            if f:
                k(f.pop(0))
    for x in f:
        k(x)


def silu_pack(acc, dst, t0):
    L = []
    for i in range(0, 16, 2):
        a, b = acc + i, acc + i + 1
        ta, tb = t0 + 1 + (i & 2), t0 + 2 + (i & 2)
        L += [f'v_cvt_pk_bf16_f32 v{t0}, v{a}, v{b}',
              f'v_lshlrev_b32 v{a}, 16, v{t0}',
              f'v_and_b32 v{b}, 0xffff0000, v{t0}',
              f'v_mul_f32 v{ta}, 0x{f2u(-LOG2E):08x}, v{a}',
              f'v_mul_f32 v{tb}, 0x{f2u(-LOG2E):08x}, v{b}',
              f'v_exp_f32 v{ta}, v{ta}',
              f'v_exp_f32 v{tb}, v{tb}',
              f'v_add_f32 v{ta}, 1.0, v{ta}',
              f'v_add_f32 v{tb}, 1.0, v{tb}',
              f'v_rcp_f32 v{ta}, v{ta}',
              f'v_rcp_f32 v{tb}, v{tb}',
              f'v_mul_f32 v{a}, v{a}, v{ta}',
              f'v_mul_f32 v{b}, v{b}, v{tb}',
              f'v_cvt_pk_bf16_f32 v{dst + i // 2}, v{a}, v{b}']
    return L


def ff_block(c, st, widx0):
    k, lg = c.k, c.lg
    idx = widx0
    pend = []
    HP = c.vS
    for mt in range(4):
        acc = c.vAcc + 16 * (mt & 1)
        main = []
        for kb in range(16):
            sub = K('tmp')
            st.k = sub
            st.vm.k = sub
            a = st.get(idx)
            cc = '0' if kb == 0 else vr(acc, 16)
            sub(f'v_mfma_f32_32x32x16_bf16 {vr(acc, 16)}, {a}, {vr(c.vXN + 4 * kb, 4)}, {cc}')
            st.refill(idx)
            idx += 1
            main.append('\n'.join(sub.lines))
        st.k = k
        st.vm.k = k
        interleave(k, main, pend)
        hp = HP + 16 * (mt & 1)
        pend = silu_pack(acc, hp, c.vT + 5 * (mt & 1))
        pend.append(f'ds_write_b128 v{c.vHW}, {vr(hp, 4)} offset:{2048 * mt}')
        pend.append(f'ds_write_b128 v{c.vHW}, {vr(hp + 4, 4)} offset:{2048 * mt + 1024}')
    for x in pend:
        k(x)
    c.stamp()
    k('s_waitcnt lgkmcnt(0)')
    lg.done = lg.issued
    k('s_barrier')
    c.stamp()
    NB = 8
    toks = {}

    def rd(kb):
        k(f'ds_read_b128 {vr(c.vXN + 4 * (kb % NB), 4)}, v{c.vL16} offset:{c.LDS_H + 1024 * kb}')
        toks[kb] = lg.issue()
    for kb in range(NB):
        rd(kb)
    acc = c.vAcc
    for kb in range(64):
        a = st.get(idx)
        lg.wait(toks[kb])
        cc = '0' if kb == 0 else vr(acc, 16)
        k(f'v_mfma_f32_32x32x16_bf16 {vr(acc, 16)}, {a}, {vr(c.vXN + 4 * (kb % NB), 4)}, {cc}')
        st.refill(idx)
        idx += 1
        if kb + NB < 64:
            rd(kb + NB)
    return idx


def gen_k1(stamps=False, PRIME=6, name='ff1qkv_kernel'):
    k = K(name)
    c = RowCtx(k)
    c.stamps = stamps
    vm, lg = c.vm, c.lg
    end = 'L_k1_end_' + name
    c.prologue(250, end)
    c.vHW = 0
    k('s_load_dwordx2 s[4:5], s[0:1], 0')
    k(f'''
    v_lshlrev_b32 v11, 9, v8
    v_lshlrev_b32 v12, 3, v9
    v_add_u32 v11, v11, v12
    s_lshl_b32 s18, s2, 14
    s_lshl_b32 s19, s16, 6
    s_add_u32 s18, s18, s19
    s_mul_i32 s17, s16, {176 * KB}
    s_waitcnt lgkmcnt(0)
    ''')
    srd(k, 8, 4, 4096000)
    srd(k, 12, 6, WS_SIZE)
    k(f'''
    s_lshl_b32 s20, s2, 14
    s_lshl_b32 s21, s16, 11
    s_add_u32 s20, s20, s21
    s_add_u32 s20, s20, {WS_XN}
    s_add_u32 s21, s21, {c.LDS_XN}
    s_mov_b32 m0, s21
    buffer_load_dwordx4 v{c.vL16}, s[12:15], s20 offen lds
    buffer_load_dwordx4 v{c.vL16}, s[12:15], s20 offen offset:1024 lds
    ''')
    vm.issue()
    td = vm.issue()
    k('s_barrier')
    st = Stream(k, vm, c.vRing, c.depth, 176, 17, c.vL16, 12)
    st.prime(PRIME)
    st.maxper = 2
    xt = []
    for i in range(4):
        k(f'buffer_load_dwordx2 {vr(c.vXP + 2 * i, 2)}, v11, s[8:11], s18 offen offset:{16 * i}')
        xt.append(vm.issue())
    c.vHW = 0
    k(f'''
    s_lshl_b32 s19, s16, 13
    v_add_u32 v12, s19, v{c.vL16}
    v_add_u32 v0, {c.LDS_H}, v12
    ''')
    vm.wait(td)
    c.stamp()
    k('s_barrier')
    for kb in range(16):
        k(f'ds_read_b128 {vr(c.vXN + 4 * kb, 4)}, v{c.vXnR} offset:{1024 * kb}')
    k('s_waitcnt lgkmcnt(0)')
    c.stamp()
    idx = ff_block(c, st, 0)
    c.stamp()
    acc = c.vAcc
    for l in round_pairs(k, [acc + i for i in range(16)], c.vT):
        k(l)
    vm.wait(xt[-1])
    unpack16(k, c.vXP, c.vF)
    for i in range(16):
        k(f'v_fmac_f32 v{c.vF + i}, 0.5, v{acc + i}')
    for i in range(8):
        k(f'v_cvt_pk_bf16_f32 v{c.vXP + i}, v{c.vF + 2 * i}, v{c.vF + 2 * i + 1}')
    unpack16(k, c.vXP, c.vF)
    k(f'''
    s_lshl_b32 s20, s2, 14
    s_lshl_b32 s21, s16, 11
    s_add_u32 s20, s20, s21
    s_add_u32 s20, s20, {WS_X1}
    buffer_store_dwordx4 {vr(c.vXP, 4)}, v{c.vL16}, s[12:15], s20 offen
    buffer_store_dwordx4 {vr(c.vXP + 4, 4)}, v{c.vL16}, s[12:15], s20 offen offset:1024
    ''')
    vm.issue()
    vm.issue()
    c.layernorm()
    c.stamp()
    k(f'''
    s_cmp_ge_u32 s2, 125
    s_cselect_b32 s22, 1, 0
    s_mul_i32 s23, s22, 125
    s_sub_u32 s23, s2, s23
    s_lshl_b32 s22, s22, 2
    s_lshr_b32 s24, s16, 1
    s_add_u32 s22, s22, s24          ; bh
    s_and_b32 s25, s16, 1            ; d half
    s_lshl_b32 s25, s25, 11          ; *2KB
    s_lshl_b32 s26, s22, 19          ; bh*512KB
    s_lshl_b32 s27, s23, 12          ; tile*4KB
    s_add_u32 s26, s26, s27
    s_add_u32 s26, s26, s25
    s_add_u32 s26, s26, {WS_Q}       ; Q dest
    s_lshl_b32 s27, s22, 20          ; bh*1MB
    s_lshl_b32 s28, s23, 13          ; tile*8KB
    s_add_u32 s27, s27, s28
    s_add_u32 s27, s27, s25
    s_add_u32 s27, s27, {WS_KV}      ; K dest
    s_add_u32 s28, s27, 4096         ; V dest
    ''')
    pend = []
    QS = 0.125 * LOG2E
    for t in range(3):
        acc = c.vAcc + 16 * (t & 1)
        main = []
        for kb in range(16):
            sub = K('tmp')
            st.k = sub
            st.vm.k = sub
            a = st.get(idx)
            cc = '0' if kb == 0 else vr(acc, 16)
            xb = vr(c.vXN + 4 * kb, 4)
            if t < 2:
                sub(f'v_mfma_f32_32x32x16_bf16 {vr(acc, 16)}, {a}, {xb}, {cc}')
            else:
                sub(f'v_mfma_f32_32x32x16_bf16 {vr(acc, 16)}, {xb}, {a}, {cc}')
            st.refill(idx)
            idx += 1
            main.append('\n'.join(sub.lines))
        st.k = k
        st.vm.k = k
        interleave(k, main, pend)
        hp = c.vS + 16 * (t & 1)
        pend = []
        if t == 0:
            for i in range(16):
                pend.append(f'v_mul_f32 v{acc + i}, 0x{f2u(QS):08x}, v{acc + i}')
        for i in range(8):
            pend.append(f'v_cvt_pk_bf16_f32 v{hp + i}, v{acc + 2 * i}, v{acc + 2 * i + 1}')
        pend.append(f'buffer_store_dwordx4 {vr(hp, 4)}, v{c.vL16}, s[12:15], s{26 + t} offen')
        pend.append(f'buffer_store_dwordx4 {vr(hp + 4, 4)}, v{c.vL16}, s[12:15], s{26 + t} offen offset:1024')
        if t < 2:
            stores = pend[-2:]
            pend = pend[:-2]
            pend_st = stores
        else:
            pend_st = pend[-2:]
            pend = pend[:-2]
        for x in pend:
            k(x)
        for x in pend_st:
            k(x)
            vm.issue()
        pend = []
    c.stamp_out()
    k.label(end)
    return k, 256, 250, RowCtx.LDS_TOTAL


def build(path):
    hdr = open('standalone__conformer_family_zipformer__speech.s.ref').read().split(
        '; Override')[0]
    ks = []
    k0, vg0, g0 = gen_k0()
    ks.append((k0, vg0, g0, 512, 8192))
    k1, vg1, g1, lds1 = gen_k1()
    ks.append((k1, vg1, g1, 512, lds1))
    from gen_attn import gen_k2
    k2, vg2, g2, lds2 = gen_k2()
    ks.append((k2, vg2, g2, 512, lds2))
    from gen_k34m import gen_k34
    k3, vg3, g3, lds3 = gen_k34()
    ks.append((k3, vg3, g3, 512, lds3))
    open(path, 'w').write(module_text(hdr, ks))


if __name__ == '__main__':
    build(sys.argv[1] if len(sys.argv) > 1 else 'k.s')
```

```python
from asmgen import *
from gen import *

def gen_k2(nodma=False, nobar=False, novalu=False, nomfma=False, name='attn_kernel', stamp=False, nopk=True, dot=False, spread=True, prio=0, pvfirst=False):
    k = K(name)
    end = 'L_k2_end_' + name
    vL16, vA0, vA1 = 1, 2, 3
    vL = {'a': 4, 'b': 6}
    vL2 = {'a': 5, 'b': 7}
    vM = {'a': 8, 'b': 9}
    vT = 10
    vTS = {'a': 14, 'b': 14}
    vOnes = 0
    vQ = {'a': 16, 'b': 32}
    vS = {'a': 48, 'b': 64}
    vN = {'a': 80, 'b': 96}
    vO = {'a': 112, 'b': 144}
    vP = {'a': 176, 'b': 184}
    vK = 192
    vV = 224
    NST = 4
    rare = []
    STAMP0 = 's_load_dwordx2 s[38:39], s[0:1], 88\n s_memtime s[40:41]\n s_memrealtime s[48:49]' if stamp else ''
    k(f'''
    s_cmp_ge_u32 s2, 256
    s_cbranch_scc1 {end}
    s_load_dwordx2 s[6:7], s[0:1], 96
    {STAMP0}
    v_lshrrev_b32 v10, 6, v0
    v_and_b32 v11, 63, v0
    v_readfirstlane_b32 s16, v10
    v_lshlrev_b32 v{vL16}, 4, v11
    s_and_b32 s17, s16, 1            ; qg
    s_lshr_b32 s18, s16, 1           ; kq
    s_and_b32 s19, s2, 7             ; bh
    s_lshr_b32 s20, s2, 3            ; qb
    s_lshl_b32 s21, s20, 2
    s_lshl_b32 s22, s17, 1
    s_add_u32 s21, s21, s22
    s_add_u32 s22, s21, 1            ; tile b
    s_min_u32 s23, s21, 124
    s_min_u32 s24, s22, 124
    s_lshl_b32 s25, s19, 19
    s_add_u32 s25, s25, {WS_Q}
    s_lshl_b32 s23, s23, 12
    s_lshl_b32 s24, s24, 12
    s_add_u32 s23, s23, s25          ; Q a offset
    s_add_u32 s24, s24, s25          ; Q b offset
    s_lshl_b32 s26, s19, 20
    s_lshl_b32 s27, s18, 18
    s_add_u32 s26, s26, s27
    s_lshl_b32 s27, s17, 12
    s_add_u32 s26, s26, s27
    s_add_u32 s26, s26, {WS_KV}
    s_xor_b32 s27, s17, 1
    s_lshl_b32 s27, s27, 13
    s_add_u32 s28, s26, s27
    s_lshl_b32 s27, s18, 13
    s_lshl_b32 s29, s17, 12
    s_add_u32 s27, s27, s29
    s_add_u32 s32, s27, 0
    s_add_u32 s33, s27, 32768
    s_add_u32 s34, s27, 65536
    s_add_u32 s35, s27, 98304
    s_lshl_b32 s27, s18, 13
    v_add_u32 v{vA0}, s27, v{vL16}
    v_add_u32 v{vA1}, 0x10000, v{vA0}
    s_waitcnt lgkmcnt(0)
    ''')
    srd(k, 12, 6, WS_SIZE)
    for x in 'ab':
        for kb in range(4):
            k(f'buffer_load_dwordx4 {vr(vQ[x] + 4 * kb, 4)}, v{vL16}, s[12:15], s{23 if x == "a" else 24} offen offset:{1024 * kb}')
    k('s_mov_b32 m0, s35')
    for j in range(4):
        k(f'buffer_load_dwordx4 v{vL16}, s[12:15], s26 offen offset:{1024 * j} lds')

    def dma_list(stage):
        L = [f's_mov_b32 m0, s{32 + stage % NST}\nbuffer_load_dwordx4 v{vL16}, s[12:15], s28 offen lds']
        for j in range(1, 4):
            L.append(f'buffer_load_dwordx4 v{vL16}, s[12:15], s28 offen offset:{1024 * j} lds')
        L[-1] += '\ns_add_u32 s28, s28, 8192'
        return L

    def dma(stage):
        for l in dma_list(stage):
            k(l)
    for st in range(3):
        dma(st)
    for x in 'ab':
        k(f'v_mov_b32 v{vL[x]}, 0')
        k(f'v_mov_b32 v{vL2[x]}, 0')
        k(f'v_mov_b32 v{vM[x]}, 0')
        for i in range(16):
            k(f'v_mov_b32 v{vN[x] + i}, 0')
        for i in range(32):
            k(f'v_mov_b32 v{vO[x] + i}, 0')
    k(f'v_mov_b32 v{vOnes}, 0x3f803f80')
    k('s_waitcnt vmcnt(12)')
    k('s_barrier')

    def lds_addr(slot, off):
        a = slot * 32768 + off
        return (vA0, a) if a < 65536 else (vA1, a - 65536)

    def rdK(par, slot):
        L = []
        for j in range(4):
            v, o = lds_addr(slot, 1024 * j)
            L.append(f'ds_read_b128 {vr(vK + 16 * par + 4 * j, 4)}, v{v} offset:{o}')
        return L

    def rdV(par, slot):
        L = []
        for j in range(4):
            v, o = lds_addr(slot, 4096 + 1024 * j)
            L.append(f'ds_read_b128 {vr(vV + 16 * par + 4 * j, 4)}, v{v} offset:{o}')
        return L

    def qk(x, par):
        L = []
        for kb in range(4):
            cc = vr(vN[x], 16) if kb == 0 else vr(vS[x], 16)
            L.append(f'v_mfma_f32_32x32x16_bf16 {vr(vS[x], 16)}, {vr(vK + 16 * par + 4 * kb, 4)}, {vr(vQ[x] + 4 * kb, 4)}, {cc}')
        return L

    def pv(x, par):
        L = []
        for s in range(2):
            for dt in range(2):
                o = vr(vO[x] + 16 * dt, 16)
                L.append(f'v_mfma_f32_32x32x16_bf16 {o}, {vr(vV + 16 * par + 8 * dt + 4 * s, 4)}, {vr(vP[x] + 4 * s, 4)}, {o}')
        return L

    def rescale_block(x, init):
        S, N, O = vS[x], vN[x], vO[x]
        L = [f'v_mov_b32 v{vT + 1}, v{vT}',
             f'v_mov_b32 v{vT + 2}, v{vT}',
             f's_nop 1',
             f'v_permlane32_swap_b32 v{vT + 1}, v{vT + 2}',
             f'v_max_f32 v{vT + 1}, v{vT + 1}, v{vT + 2}']
        if not init:
            L.append(f'v_max_f32 v{vT + 1}, 0, v{vT + 1}')
        L.append(f'v_add_f32 v{vM[x]}, v{vM[x]}, v{vT + 1}')
        for i in range(16):
            L.append(f'v_sub_f32 v{S + i}, v{S + i}, v{vT + 1}')
        for i in range(16):
            L.append(f'v_sub_f32 v{N + i}, v{N + i}, v{vT + 1}')
        if not init:
            L.append(f'v_sub_f32 v{vT + 2}, 0, v{vT + 1}')
            L.append(f'v_exp_f32 v{vT + 2}, v{vT + 2}')
            L.append(f's_nop 0')
            L.append(f'v_mul_f32 v{vL[x]}, v{vL[x]}, v{vT + 2}')
            L.append(f'v_mul_f32 v{vL2[x]}, v{vL2[x]}, v{vT + 2}')
            for i in range(32):
                L.append(f'v_mul_f32 v{O + i}, v{O + i}, v{vT + 2}')
        return L

    def maxchain(x):
        S = vS[x]
        L = [f'v_max3_f32 v{vT}, v{S}, v{S + 1}, v{S + 2}']
        for i in range(3, 15, 2):
            L.append(f'v_max3_f32 v{vT}, v{vT}, v{S + i}, v{S + i + 1}')
        L.append(f'v_max_f32 v{vT}, v{vT}, v{S + 15}')
        return L

    def expsum(x):
        S = vS[x]
        ts = vTS[x]
        L = []

        def post(j):
            L.append(f'v_cvt_pk_bf16_f32 v{vP[x] + j // 2}, v{S + j}, v{S + j + 1}')
            if dot:
                if j >= 2:
                    jj = j - 2
                    cc = '0' if jj == 0 else f'v{ts}'
                    L.append(f'v_dot2_f32_bf16 v{ts}, v{vP[x] + jj // 2}, v{vOnes}, {cc}')
            elif nopk:
                if j == 2:
                    L.append(f'v_add_f32 v{ts}, v{S}, v{S + 2}')
                    L.append(f'v_add_f32 v{ts + 1}, v{S + 1}, v{S + 3}')
                elif j > 2:
                    L.append(f'v_add_f32 v{ts}, v{ts}, v{S + j}')
                    L.append(f'v_add_f32 v{ts + 1}, v{ts + 1}, v{S + j + 1}')
            elif j == 2:
                L.append(f'v_pk_add_f32 {vr(ts, 2)}, {vr(S, 2)}, {vr(S + 2, 2)}')
            elif j > 2:
                L.append(f'v_pk_add_f32 {vr(ts, 2)}, {vr(ts, 2)}, {vr(S + j, 2)}')
        for i in range(0, 16, 2):
            L.append(f'v_exp_f32 v{S + i}, v{S + i}')
            L.append(f'v_exp_f32 v{S + i + 1}, v{S + i + 1}')
            if i >= 2:
                post(i - 2)
        post(14)
        if dot:
            L.append(f'v_dot2_f32_bf16 v{ts}, v{vP[x] + 7}, v{vOnes}, v{ts}')
            L.append('s_nop 2')
        return L

    def softmax(x, init, par):
        ts = vTS[x]
        L = []
        if init:
            L += maxchain(x)
            L.append('\n'.join(rescale_block(x, True)))
            L += expsum(x)
        else:
            L += expsum(x)
            lab = k.newlabel('Lrs')
            if not dot:
                L.append(f'v_add_f32 v{vT + 3}, v{ts}, v{ts + 1}')
            L.append(f'v_cmp_lt_f32 vcc, 0x44800000, v{ts if dot else vT + 3}\ns_cbranch_vccnz {lab}\n{lab}_ret:')
            rare.append((lab, qk(x, par) + ['s_nop 12'] + maxchain(x) + rescale_block(x, False) + expsum(x)))
        if dot:
            L.append(f'v_add_f32 v{vL[x]}, v{vL[x]}, v{ts}')
        else:
            L.append(f'v_add_f32 v{vL[x]}, v{vL[x]}, v{ts}')
            L.append(f'v_add_f32 v{vL2[x]}, v{vL2[x]}, v{ts + 1}')
        return L

    def emit_mix(mf, va, pre=()):
        pre = list(pre)
        if not spread:
            for p in pre:
                k(p)
            pre = []
        if novalu:
            va = [x for x in va if 'v_cmp' in x or '\n' in x]
        if nomfma:
            mf = []
        n = len(mf)
        per = len(va) / max(n, 1)
        pper = -(-len(pre) // max(n - 1, 1))
        vi = 0

        def put(item):
            for l in item.split('\n'):
                if l.endswith(':'):
                    k.label(l[:-1])
                else:
                    k(l)
        for m in range(n):
            k(mf[m])
            for _ in range(pper):
                if pre:
                    put(pre.pop(0))
            tgt = int(round(per * (m + 1)))
            while vi < min(tgt, len(va)):
                put(va[vi])
                vi += 1
        for p in pre:
            put(p)
        while vi < len(va):
            put(va[vi])
            vi += 1

    def setinf(x):
        lab = k.newlabel('Lni')
        k(f's_cmp_eq_u32 s18, 3')
        k(f's_cbranch_scc0 {lab}')
        for i in range(16):
            k(f'v_mov_b32 v{vN[x] + i}, 0xff800000')
        k.label(lab)

    if prio:
        lab = k.newlabel('Lpr')
        k('s_cmp_ge_u32 s16, 4')
        k(f's_cbranch_scc0 {lab}')
        k('s_setprio 1')
        k.label(lab)
    for l in rdK(0, 3):
        k(l)
    k('s_waitcnt lgkmcnt(0)')
    for l in qk('a', 0):
        k(l)

    def iteration(i, imod, first=False):
        par = imod & 1
        npar = par ^ 1
        last = (i == 31)
        if i is None or i <= 29:
            k('s_waitcnt vmcnt(8)')
        elif i == 30:
            k('s_waitcnt vmcnt(4)')
        else:
            k('s_waitcnt vmcnt(0)')
        if not nobar:
            k('s_barrier')
        dl = []
        if (i is None or i + 3 <= 31) and not nodma:
            dl = dma_list(imod + 3)
        pre = rdV(par, imod)
        if not last:
            pre = rdK(npar, imod) + pre
        pre = pre + dl
        if i == 29:
            setinf('b')
        mf = qk('b', par) + ([] if first else pv('b', npar))
        if pvfirst and not first:
            mf = pv('b', npar) + qk('b', par)
        emit_mix(mf, softmax('a', first, par), pre)
        if i == 28:
            setinf('a')
        k('s_waitcnt lgkmcnt(0)')
        mf = ([] if last else qk('a', npar)) + pv('a', par)
        emit_mix(mf, softmax('b', first, par))

    if stamp:
        k('s_memtime s[42:43]')
    iteration(0, 0, first=True)
    k('s_mov_b32 s30, 6')
    lp = 'L_k2_loop_' + name
    k.label(lp)
    for im in (1, 2, 3, 0):
        iteration(None, im)
    k(f'''
    s_sub_u32 s30, s30, 1
    s_cmp_lg_u32 s30, 0
    s_cbranch_scc1 {lp}
    ''')
    for i in range(25, 32):
        iteration(i, i % 4)
    if stamp:
        k('s_memtime s[44:45]')
    for l in pv('b', 1):
        k(l)
    for x in 'ab':
        k(f'v_add_f32 v{vL[x]}, v{vL[x]}, v{vL2[x]}')
        k(f'v_mov_b32 v{vT}, v{vL[x]}')
        k(f'v_mov_b32 v{vT + 1}, v{vL[x]}')
        k('s_nop 1')
        k(f'v_permlane32_swap_b32 v{vT}, v{vT + 1}')
        k(f'v_add_f32 v{vL[x]}, v{vT}, v{vT + 1}')
    k('s_barrier')
    k(f'''
    s_lshl_b32 s31, s16, 14
    v_add_u32 v{vA0}, s31, v{vL16}
    s_lshl_b32 s31, s16, 10
    s_add_u32 s31, s31, 0x20000
    v_lshrrev_b32 v{vA1}, 1, v{vL16}
    v_add_u32 v{vA1}, s31, v{vA1}
    ''')
    for q in range(16):
        k(f'ds_write_b128 v{vA0}, {vr(vO["a"] + 4 * q, 4)} offset:{1024 * q}')
    for xi, x in enumerate('ab'):
        k(f'v_mov_b32 v{vT}, v{vM[x]}')
        k(f'v_mov_b32 v{vT + 1}, v{vL[x]}')
        k(f'ds_write_b64 v{vA1}, {vr(vT, 2)} offset:{512 * xi}')
    k('s_waitcnt lgkmcnt(0)')
    k('s_barrier')
    k(f'''
    s_lshl_b32 s31, s17, 14
    s_lshl_b32 s36, s18, 12
    s_add_u32 s31, s31, s36
    v_add_u32 v{vA0}, s31, v{vL16}
    v_add_u32 v{vK}, 0x10000, v{vA0}
    s_lshl_b32 s31, s17, 10
    s_lshr_b32 s36, s18, 1
    s_lshl_b32 s36, s36, 9
    s_add_u32 s31, s31, s36
    s_add_u32 s31, s31, 0x20000
    v_lshrrev_b32 v{vA1}, 1, v{vL16}
    v_add_u32 v{vA1}, s31, v{vA1}
    ''')
    R0 = 48
    for kp in range(4):
        k(f'ds_read_b64 {vr(16 + 2 * kp, 2)}, v{vA1} offset:{2048 * kp}')
    for kp in range(4):
        for q in range(4):
            a = kp * 32768 + q * 1024
            v, o = (vA0, a) if a < 65536 else (vK, a - 65536)
            k(f'ds_read_b128 {vr(R0 + 16 * kp + 4 * q, 4)}, v{v} offset:{o}')
    k('s_waitcnt lgkmcnt(0)')
    k(f'''
    v_max_f32 v24, v16, v18
    v_max3_f32 v24, v24, v20, v22
    v_sub_f32 v25, v16, v24
    v_sub_f32 v26, v18, v24
    v_sub_f32 v27, v20, v24
    v_sub_f32 v28, v22, v24
    v_exp_f32 v25, v25
    v_exp_f32 v26, v26
    v_exp_f32 v27, v27
    v_exp_f32 v28, v28
    s_nop 0
    v_mul_f32 v29, v25, v17
    v_fmac_f32 v29, v26, v19
    v_fmac_f32 v29, v27, v21
    v_fmac_f32 v29, v28, v23
    v_rcp_f32 v29, v29
    s_nop 0
    v_mul_f32 v25, v25, v29
    v_mul_f32 v26, v26, v29
    v_mul_f32 v27, v27, v29
    v_mul_f32 v28, v28, v29
    ''')
    for i in range(16):
        k(f'v_mul_f32 v{R0 + i}, v{R0 + i}, v25')
    for kp in range(1, 4):
        for i in range(16):
            k(f'v_fmac_f32 v{R0 + i}, v{R0 + 16 * kp + i}, v{25 + kp}')
    for i in range(8):
        k(f'v_cvt_pk_bf16_f32 v{32 + i}, v{R0 + 2 * i}, v{R0 + 2 * i + 1}')
    if stamp:
        k('''
        s_memtime s[46:47]
        s_memrealtime s[50:51]
        s_waitcnt lgkmcnt(0)
        s_sub_u32 s42, s42, s40
        s_sub_u32 s44, s44, s40
        s_sub_u32 s46, s46, s40
        s_sub_u32 s50, s50, s48
        s_mov_b32 s52, s38
        s_and_b32 s53, s39, 0xffff
        s_mov_b32 s54, 256
        s_mov_b32 s55, 0x20000
        v_mov_b32 v40, s42
        v_mov_b32 v41, s44
        v_mov_b32 v42, s46
        v_mov_b32 v43, s50
        s_lshl_b32 s56, s2, 3
        s_add_u32 s56, s56, s16
        s_lshl_b32 s56, s56, 4
        v_mov_b32 v44, 0
        buffer_store_dwordx4 v[40:43], v44, s[52:55], s56 offen
        ''')
    k(f'''
    s_lshr_b32 s36, s18, 1
    s_add_u32 s36, s36, s21           ; tile
    s_cmp_gt_u32 s36, 124
    s_cbranch_scc1 {end}
    s_lshr_b32 s37, s19, 2            ; b
    s_mul_i32 s37, s37, 125
    s_add_u32 s36, s36, s37
    s_lshl_b32 s36, s36, 14
    s_and_b32 s37, s19, 3             ; head
    s_lshl_b32 s37, s37, 12
    s_add_u32 s36, s36, s37
    s_and_b32 s37, s18, 1
    s_lshl_b32 s37, s37, 11
    s_add_u32 s36, s36, s37
    s_add_u32 s36, s36, {WS_ATT}
    buffer_store_dwordx4 v[32:35], v{vL16}, s[12:15], s36 offen
    buffer_store_dwordx4 v[36:39], v{vL16}, s[12:15], s36 offen offset:1024
    s_branch {end}
    ''')
    for lab, L in rare:
        k.label(lab)
        k('s_nop 12')
        for l in L:
            k(l)
        k('s_nop 4')
        k(f's_branch {lab}_ret')
    k.label(end)
    return k, 256, 256, 128 * 1024 + 8192
```
